```python
import torch

def _softmax(x, axis=-1):
    return torch.softmax(x, dim=axis)
def _gelu(x):
    return torch.nn.functional.gelu(x, approximate="tanh")
def _silu(x):
    return torch.nn.functional.silu(x)
def _sigmoid(x):
    return torch.sigmoid(x)
def _layernorm(x, axis=-1, eps=1e-5):
    m = x.mean(dim=axis, keepdim=True)
    v = x.var(dim=axis, keepdim=True, unbiased=False)
    return (x - m) / torch.sqrt(v + eps)
def _scatter_add(tgt, idx, src, axis=0):
    return tgt.clone().index_add_(axis, idx, src)
def _segment_sum(src, seg, n):
    out = torch.zeros((n,) + src.shape[1:], dtype=src.dtype)
    return out.index_add_(0, seg, src)
def _pad(x, pw):
    flat = tuple(v for pair in reversed(pw) for v in pair)
    return torch.nn.functional.pad(x, flat)

kernel_name = 'parallel_sum__linear_kernel_hedgehog__dense_activation_relu__prompt'

def setup_inputs():

    _w = (lambda a: (lambda t: t.to(torch.bfloat16) if t.is_floating_point() else t)(torch.as_tensor(a)))
    def _A_setup():
        B, S, D, H = 1, 2048, 576, 32
        Dh = D // H
        return {
            "x": _w((lambda *s: torch.randn(*s, dtype=torch.bfloat16) * 0.05)(B, S, D)),
            "wqkv": _w((lambda *s: torch.randn(*s, dtype=torch.bfloat16) * 0.8)(D, 3 * D)),
            "w_phi": _w((lambda *s: torch.randn(*s, dtype=torch.bfloat16) * 0.8)(H, Dh, Dh) * (Dh ** -0.5)),
            "wo": _w((lambda *s: torch.randn(*s, dtype=torch.bfloat16) * 0.2)(D, D)),
        }
    _A_in = _A_setup()

    def _B_setup():
        B, S, D, Dff = 1, 2048, 576, 4608
        return {
            "x": _w((lambda *s: torch.randn(*s, dtype=torch.bfloat16) * 0.05)(B, S, D)),
            "w1": _w((lambda *s: torch.randn(*s, dtype=torch.bfloat16) * 0.05)(D, Dff)),
            "w2": _w((lambda *s: torch.randn(*s, dtype=torch.bfloat16) * 0.05)(Dff, D)),
        }
    _B_in = _B_setup()

    return {
        "A_x": _A_in["x"],
        "A_wqkv": _A_in["wqkv"],
        "A_w_phi": _A_in["w_phi"],
        "A_wo": _A_in["wo"],
        "B_x": _B_in["x"],
        "B_w1": _B_in["w1"],
        "B_w2": _B_in["w2"],
    }

def reference(A_x, A_wqkv, A_w_phi, A_wo, B_x, B_w1, B_w2):
    def _A_ref(x, wqkv, w_phi, wo):
        B, S, D = x.shape
        H = 32; Dh = D // H
        qkv = (lambda x, *d: x.permute(*d))((x @ wqkv).reshape(B, S, 3, H, Dh), 2, 0, 3, 1, 4)
        q, k, v = qkv[0], qkv[1], qkv[2]
        pq = torch.einsum("bhsd,hdf->bhsf", q, w_phi)
        pk = torch.einsum("bhsd,hdf->bhsf", k, w_phi)
        phi_q = torch.concatenate([_softmax(pq, axis=-1), _softmax(-pq, axis=-1)], axis=-1)
        phi_k = torch.concatenate([_softmax(pk, axis=-1), _softmax(-pk, axis=-1)], axis=-1)
        kv = torch.einsum("bhsf,bhsd->bhfd", phi_k, v)
        z  = torch.einsum("bhsf->bhf", phi_k)
        num = torch.einsum("bhqf,bhfd->bhqd", phi_q, kv)
        den = torch.einsum("bhqf,bhf->bhq", phi_q, z)[..., None] + 1e-6
        o = num / den
        return (lambda x, *d: x.permute(*d))(o, 0, 2, 1, 3).reshape(B, S, D) @ wo

    def _B_ref(x, w1, w2):
        h = torch.einsum("bsd,df->bsf", x, w1)
        zero = torch.zeros_like(h)
        h = torch.maximum(h, zero)
        return torch.einsum("bsf,fd->bsd", h, w2)

    x = A_x
    xn = _layernorm(x, axis=-1)
    return x + _A_ref(xn, A_wqkv, A_w_phi, A_wo) + _B_ref(xn, B_w1, B_w2)
```

```python
import re, collections

def regs(p, n, k=1):
    return ["%s%d" % (p, n + i) for i in range(k)]

def rs(p, n, k=1):
    return "%s%d" % (p, n) if k == 1 else "%s[%d:%d]" % (p, n, n + k - 1)

class R:
    def __init__(s, p, n, k=1):
        s.p, s.n, s.k = p, n, k
        if p in 'va': assert 0 <= n and n + k <= 256, (p, n, k)
        if p == 's': assert 0 <= n and n + k <= 102
        if k >= 2 and p in 'va': assert n % 2 == 0, (p, n, k)
        if k == 2 and p == 's': assert n % 2 == 0
        if k >= 4 and p == 's': assert n % 4 == 0
    def __str__(s): return rs(s.p, s.n, s.k)
    def regs(s): return regs(s.p, s.n, s.k)
    def sub(s, i, k=1):
        assert i + k <= s.k
        return R(s.p, s.n + i, k)
    def __getitem__(s, i): return s.sub(i, 1)

def V(n, k=1): return R('v', n, k)
def A(n, k=1): return R('a', n, k)
def S(n, k=1): return R('s', n, k)

def oregs(o):
    if isinstance(o, R): return o.regs()
    if isinstance(o, str):
        t = o.lstrip('-')
        if t in ('vcc', 'exec', 'm0', 'scc'): return [t]
        m = re.match(r'^([vas])(\d+)$', t)
        if m: return [t]
        m = re.match(r'^([vas])\[(\d+):(\d+)\]$', t)
        if m: return regs(m.group(1), int(m.group(2)), int(m.group(3)) - int(m.group(2)) + 1)
    return []

INLINE_F = {0.0: '0', 0.5: '0.5', -0.5: '-0.5', 1.0: '1.0', -1.0: '-1.0', 2.0: '2.0', -2.0: '-2.0', 4.0: '4.0', -4.0: '-4.0'}
def is_literal(o):
    if isinstance(o, int):
        return not (-16 <= o <= 64)
    if isinstance(o, str) and o.startswith('0x'):
        v = int(o, 16)
        return not (v <= 64)
    return False
def ostr(o):
    if isinstance(o, int):
        if -16 <= o <= 64: return str(o)
        return "0x%x" % (o & 0xffffffff)
    return str(o)

class I:
    __slots__ = ('text', 'kind', 'rd', 'wr', 'size', 'flex', 'stream', 'tag', 'need_vm', 'need_lgkm', 'idx', 'preds',
                 'srcc', 'dst', 'ab', 'wide', 'done', 't', 'lat', 'lds', 'sync', 'note', 'minpos', 'fill')
    def __init__(s, text, kind, rd=(), wr=(), size=8, flex=False, **kw):
        s.text, s.kind, s.rd, s.wr, s.size, s.flex = text, kind, list(rd), list(wr), size, flex
        s.stream = 0; s.tag = None; s.need_vm = (); s.need_lgkm = (); s.srcc = None; s.dst = None; s.ab = ()
        s.wide = (); s.done = False; s.t = 0; s.lat = None; s.lds = None; s.sync = None; s.note = None; s.preds = ()
        s.fill = None
        for k, v in kw.items(): setattr(s, k, v)

TRANS = ('v_exp_f32', 'v_rcp_f32', 'v_sqrt_f32', 'v_rsq_f32', 'v_log_f32')
VOP12 = {'v_mov_b32', 'v_add_u32', 'v_sub_u32', 'v_subrev_u32', 'v_lshlrev_b32', 'v_lshrrev_b32', 'v_and_b32', 'v_or_b32', 'v_xor_b32',
         'v_mul_u32_u24', 'v_add_f32', 'v_sub_f32', 'v_subrev_f32', 'v_mul_f32', 'v_max_f32', 'v_min_f32', 'v_fmac_f32', 'v_exp_f32', 'v_rcp_f32',
         'v_sqrt_f32', 'v_rsq_f32', 'v_log_f32', 'v_cvt_f32_u32', 'v_cvt_u32_f32', 'v_min_u32', 'v_max_u32', 'v_not_b32', 'v_ashrrev_i32'}

class Prog:
    def __init__(s):
        s.L = []
        s.cur = 0
        s.tail = []
        s.fills = {}
    def stream(s, n): s.cur = n
    def add(s, ins):
        ins.stream = s.cur; ins.idx = len(s.L); s.L.append(ins); return ins
    def valu(s, op, dst, *src, xrd=(), xwr=(), mods=''):
        rd = [r for o in src for r in oregs(o)] + list(xrd) + ['exec']
        wr = oregs(dst) + list(xwr)
        if op in ('v_fmac_f32',): rd += oregs(dst)
        lit = any(is_literal(o) for o in src)
        kind = 'trans' if op in TRANS else 'valu'
        ops = ", ".join(ostr(o) for o in (dst,) + src)
        if op in VOP12:
            e32ok = (len(src) == 1 or (isinstance(src[1], R) and src[1].p == 'v')) and not any(isinstance(o, str) and o.startswith('-') and not re.match(r'^-[\d.]+$', o) for o in src) and not mods
            if lit:
                assert e32ok, (op, dst, src)
                return s.add(I("%s_e32 %s" % (op, ops), kind, rd, wr, 8))
            if e32ok:
                return s.add(I("%s_E %s" % (op, ops), kind, rd, wr, 8, flex=True))
            return s.add(I("%s_e64 %s%s" % (op, ops, mods), kind, rd, wr, 8))
        assert not lit, (op, dst, src)
        return s.add(I("%s %s%s" % (op, ops, mods), kind, rd, wr, 8))
    def vcmp(s, op, dst, a, b):
        rd = oregs(a) + oregs(b) + ['exec']
        return s.add(I("%s_e64 %s, %s, %s" % (op, ostr(dst), ostr(a), ostr(b)), 'valu', rd, oregs(dst), 8))
    def cndmask(s, dst, a, b, m):
        rd = oregs(a) + oregs(b) + oregs(m) + ['exec']
        return s.add(I("v_cndmask_b32_e64 %s, %s, %s, %s" % (dst, ostr(a), ostr(b), m), 'valu', rd, oregs(dst), 8))
    def rfl(s, dst, src):
        return s.add(I("v_readfirstlane_b32 %s, %s" % (dst, src), 'rfl', oregs(src) + ['exec'], oregs(dst), 4))
    def accw(s, dst, src):
        return s.add(I("v_accvgpr_write_b32 %s, %s" % (dst, ostr(src)), 'valu', oregs(src) + ['exec'], oregs(dst), 8))
    def accr(s, dst, src):
        return s.add(I("v_accvgpr_read_b32 %s, %s" % (dst, src), 'valu', oregs(src) + ['exec'], oregs(dst), 8))
    def cvtpk(s, dst, a, b):
        return s.valu('v_cvt_pk_bf16_f32', dst, a, b)
    def salu(s, op, dst, *src, scc=True, xrd=(), xwr=()):
        rd = [r for o in src for r in oregs(o)] + list(xrd)
        wr = (oregs(dst) if dst is not None else []) + list(xwr)
        if op.startswith('s_cmp') or (scc and op not in ('s_mov_b32', 's_mov_b64', 's_mul_i32', 's_cselect_b32', 's_cselect_b64', 's_movk_i32', 's_mul_hi_u32', 's_getpc_b64')):
            pass
        lit = any(is_literal(o) for o in src)
        ops = ", ".join(ostr(o) for o in ((dst,) if dst is not None else ()) + src)
        return s.add(I("%s %s" % (op, ops), 'salu', rd, wr, 8 if lit else 4))
    def mfma(s, d, a, b, c, shape='16x16x32'):
        kind = 'mfma4' if shape == '4x4x4_16b' else 'mfma16'
        op = {'16x16x32': 'v_mfma_f32_16x16x32_bf16', '16x16x16': 'v_mfma_f32_16x16x16_bf16', '4x4x4_16b': 'v_mfma_f32_4x4x4_16b_bf16'}[shape]
        if isinstance(c, R): assert c.p == d.p
        cr = oregs(c)
        ins = I("%s %s, %s, %s, %s" % (op, d, a, b, ostr(c)), kind, a.regs() + b.regs() + cr + ['exec'], d.regs(), 8)
        ins.srcc = tuple(cr); ins.dst = tuple(d.regs()); ins.ab = tuple(a.regs() + b.regs())
        return s.add(ins)
    def dsr(s, op, dst, addr, off=0, tag=None, xrd=(), lds=None):
        assert 0 <= off < 65536, off
        return s.add(I("%s %s, %s offset:%d" % (op, dst, addr, off), 'dsr', oregs(addr) + list(xrd) + ['exec'], oregs(dst), 8, tag=tag, lds=lds))
    def dsw(s, op, addr, data, off=0, tag=None, xrd=(), xwr=(), lds=None):
        assert 0 <= off < 65536, off
        return s.add(I("%s %s, %s offset:%d" % (op, addr, data, off), 'dsw', oregs(addr) + oregs(data) + list(xrd) + ['exec'], list(xwr), 8, tag=tag, lds=lds))
    def bperm(s, dst, addr, src):
        return s.add(I("ds_bpermute_b32 %s, %s, %s" % (dst, addr, src), 'dsr', oregs(addr) + oregs(src) + ['exec'], oregs(dst), 8))
    def vld(s, op, dst, voff, srd, soff=0, off=0, flags='', tag=None, xrd=(), lat=None):
        assert 0 <= off < 4096
        t = "%s %s, %s, %s, %s offen" % (op, dst, voff, srd, ostr(soff))
        if off: t += " offset:%d" % off
        if flags: t += " " + flags
        return s.add(I(t, 'vld', oregs(voff) + oregs(srd) + oregs(soff) + list(xrd) + ['exec'], oregs(dst), 8, tag=tag, lat=lat))
    def vst(s, op, data, voff, srd, soff=0, off=0, flags='', tag=None, xrd=(), xwr=(), need_vm=()):
        assert 0 <= off < 4096
        t = "%s %s, %s, %s, %s offen" % (op, data, voff, srd, ostr(soff))
        if off: t += " offset:%d" % off
        if flags: t += " " + flags
        ins = I(t, 'vst', oregs(data) + oregs(voff) + oregs(srd) + oregs(soff) + list(xrd) + ['exec'], list(xwr), 8, tag=tag, need_vm=need_vm)
        if 'x4' in op or 'x3' in op: ins.wide = tuple(oregs(data))
        return s.add(ins)
    def dma(s, voff, srd, soff, off=0, tag=None, xrd=(), lds=None):
        assert 0 <= off < 4096
        t = "buffer_load_dwordx4 %s, %s, %s offen" % (voff, srd, ostr(soff))
        if off: t += " offset:%d" % off
        t += " lds"
        return s.add(I(t, 'dma', oregs(voff) + oregs(srd) + oregs(soff) + ['m0', 'exec'] + list(xrd), [], 8, tag=tag, lds=lds))
    def barrier(s, need_vm=(), need_lgkm=(), xrd=(), xwr=()):
        return s.add(I("s_barrier", 'bar', list(xrd), list(xwr), 4, need_vm=tuple(need_vm), need_lgkm=tuple(need_lgkm)))
    def sync_post(s, tag, xrd=()):
        return s.add(I("", 'syncp', list(xrd), ['sp_' + str(tag)], 0, sync=tag))
    def sync_wait(s, tag):
        return s.add(I("", 'syncw', ['sp_' + str(tag)], [], 0, sync=tag))
    def raw(s, text, kind='other', rd=(), wr=(), size=4, **kw):
        return s.add(I(text, kind, rd, wr, size, **kw))
    def waitall(s, vm=True, lg=True):
        return s.add(I("", 'waitall', [], [], 0, note=(vm, lg)))
    def setfill(s, n):
        return s.add(I("", 'fill', [], [], 0, fill=n))
    def fence(s):
        return s.add(I("", 'fence', [], [], 0))
    def comment(s, t):
        return s.add(I("; " + t, 'comment', [], [], 0))

    def deps(s):
        lw = {}; rdrs = collections.defaultdict(list)
        last_in_stream = {}
        for ins in s.L:
            p = set()
            if ins.kind == 'fence':
                for st, l in last_in_stream.items(): p.add(l)
            for r in ins.rd:
                if r in lw: p.add(lw[r])
            for r in ins.wr:
                if r in lw: p.add(lw[r])
                for x in rdrs[r]: p.add(x)
            for r in ins.rd: rdrs[r].append(ins)
            for r in ins.wr:
                lw[r] = ins; rdrs[r] = []
            p.discard(ins)
            ins.preds = [x for x in p if x.stream != ins.stream]
            last_in_stream[ins.stream] = ins
        lastfence = None; seen = set()
        for ins in s.L:
            if ins.kind == 'fence':
                lastfence = ins; seen = set()
            elif lastfence is not None and ins.stream != lastfence.stream and ins.stream not in seen:
                ins.preds = list(ins.preds) + [lastfence]; seen.add(ins.stream)

DS_LAT = 110
VM_LAT = 1500

class Emitter:
    def __init__(s):
        s.out = []
        s.pos = 0
        s.t = 0
        s.mf_free = 0
        s.valu_w = {}; s.trans_w = {}; s.mf_w = {}; s.mf_c = {}; s.vsg_w = {}; s.m0_w = -99; s.wide = {}
        s.lq = []
        s.vq = []
        s.pend_l = {}
        s.pend_v = {}
        s.nnop = 0; s.nwait = 0
        s.stall = 0
    def hz(s, ins):
        need = 0
        k = ins.kind
        def d(p, n):
            nonlocal need
            need = max(need, n - (s.pos - p - 1))
        isv = k in ('valu', 'trans', 'rfl')
        ismf = k in ('mfma16', 'mfma4')
        ismem = k in ('dsr', 'dsw', 'vld', 'vst', 'dma')
        if ismf:
            for r in ins.rd:
                if r in s.valu_w: d(s.valu_w[r], 2)
            for r in ins.ab:
                if r in s.mf_w:
                    p, pk, dst = s.mf_w[r]; d(p, 8 if pk == 'mfma16' else 5)
            for r in ins.srcc:
                if r in s.mf_w:
                    p, pk, dst = s.mf_w[r]
                    if dst == ins.srcc and pk == k: d(p, 0 if pk == 'mfma16' else 2)
                    else: d(p, 6 if pk == 'mfma16' else 4)
            for r in ins.wr:
                if r in s.mf_w and r not in ins.srcc:
                    p, pk, dst = s.mf_w[r]; d(p, 6 if pk == 'mfma16' else 4)
        if isv or ismem:
            for r in list(ins.rd) + list(ins.wr):
                if r in s.mf_w:
                    p, pk, dst = s.mf_w[r]; d(p, 8 if pk == 'mfma16' else 5)
        if isv:
            for r in ins.wr:
                if r in s.mf_c:
                    p, pk = s.mf_c[r]; d(p, 3 if pk == 'mfma16' else 1)
                if r in s.wide: d(s.wide[r], 2)
            for r in ins.rd:
                if r in s.trans_w and k != 'trans': d(s.trans_w[r], 1)
                if r in s.trans_w and k == 'trans': d(s.trans_w[r], 1)
                if r in s.vsg_w: d(s.vsg_w[r], 2)
            if k == 'rfl' or 'permlane' in ins.text or 'dpp' in ins.text or 'readlane' in ins.text:
                for r in ins.rd:
                    if r in s.valu_w: d(s.valu_w[r], 1 if k == 'rfl' else 2)
        if ismem:
            for r in ins.rd:
                if r in s.vsg_w: d(s.vsg_w[r], 5)
                if r in s.trans_w: d(s.trans_w[r], 1)
            for r in ins.wr:
                if r in s.wide: d(s.wide[r], 1)
        if k == 'dma': d(s.m0_w, 1)
        if k == 'salu' or k == 'other':
            for r in ins.rd:
                if r in s.vsg_w: d(s.vsg_w[r], 1)
        return max(need, 0)
    def waits(s, ins):
        li = -1; vi = -1
        for r in list(ins.rd) + list(ins.wr):
            x = s.pend_l.get(r)
            if x is not None and x in s.lq: li = max(li, s.lq.index(x))
            x = s.pend_v.get(r)
            if x is not None and x in s.vq: vi = max(vi, s.vq.index(x))
        for tg in ins.need_lgkm:
            for i, x in enumerate(s.lq):
                if x.tag == tg: li = max(li, i)
        for tg in ins.need_vm:
            for i, x in enumerate(s.vq):
                if x.tag == tg: vi = max(vi, i)
        return li, vi
    def ready(s, ins):
        if s.hz(ins) > 0: return False
        li, vi = s.waits(ins)
        if li >= 0 and s.lq[li].t + DS_LAT > s.t: return False
        if vi >= 0 and s.vq[vi].t + (s.vq[vi].lat or VM_LAT) > s.t: return False
        return True
    def needs_wait(s, ins):
        li, vi = s.waits(ins)
        return li >= 0 or vi >= 0
    def put(s, ins, states=1):
        k = ins.kind
        if k in ('mfma16', 'mfma4'):
            st = max(s.t, s.mf_free)
            ins.t = st
            s.mf_free = st + (16 if k == 'mfma16' else 8)
            s.t = st + (8 if k == 'mfma16' else 4)
        else:
            ins.t = s.t
            s.t += 8 if k == 'trans' else 4 * states
        s.out.append(ins)
        s.pos += states
    def emit_wait(s, li, vi):
        parts = []
        if li >= 0:
            s.t = max(s.t, s.lq[li].t + 64)
            while li + 1 < len(s.lq) and s.lq[li + 1].t + DS_LAT <= s.t: li += 1
            n = min(len(s.lq) - 1 - li, 15)
            li = len(s.lq) - 1 - n
            parts.append("lgkmcnt(%d)" % n)
            s.lq = s.lq[li + 1:]
        if vi >= 0:
            n = min(len(s.vq) - 1 - vi, 63)
            vi = len(s.vq) - 1 - n
            parts.insert(0, "vmcnt(%d)" % n)
            s.vq = s.vq[vi + 1:]
        s.nwait += 1
        s.put(I("s_waitcnt " + " ".join(parts), 'wait', size=4))
    def emit(s, ins):
        k = ins.kind
        if k in ('comment',):
            s.out.append(ins); return
        if k == 'waitall':
            vm, lg = ins.note
            parts = []
            if vm: parts.append("vmcnt(0)"); s.vq = []
            if lg: parts.append("lgkmcnt(0)"); s.lq = []
            s.put(I("s_waitcnt " + " ".join(parts), 'wait', size=4)); return
        li, vi = s.waits(ins)
        if li >= 0 or vi >= 0: s.emit_wait(li, vi)
        n = s.hz(ins)
        while n > 0:
            m = min(n, 16)
            s.put(I("s_nop %d" % (m - 1), 'nop', size=4), states=m); s.nnop += m
            n -= m
        p = s.pos
        s.put(ins)
        isv = k in ('valu', 'trans', 'rfl')
        for r in ins.wr:
            for dct in (s.valu_w, s.trans_w, s.mf_w, s.vsg_w): dct.pop(r, None)
            s.pend_l.pop(r, None); s.pend_v.pop(r, None)
        if isv:
            for r in ins.wr:
                if r[0] in 'va' and r != 'vcc':
                    s.valu_w[r] = p
                    if k == 'trans': s.trans_w[r] = p
                else: s.vsg_w[r] = p
        if k in ('mfma16', 'mfma4'):
            for r in ins.wr: s.mf_w[r] = (p, k, ins.dst)
            for r in ins.srcc: s.mf_c[r] = (p, k)
        if k == 'salu' and 'm0' in ins.wr: s.m0_w = p
        for r in ins.wide: s.wide[r] = p
        if k in ('dsr', 'dsw'):
            s.lq.append(ins)
            if k == 'dsr':
                for r in ins.wr: s.pend_l[r] = ins
        if k in ('vld', 'vst', 'dma'):
            s.vq.append(ins)
            if k == 'vld':
                for r in ins.wr: s.pend_v[r] = ins

def slots(ins):
    if ins.kind in ('comment', 'syncp', 'syncw', 'fill', 'fence'): return 0
    return 2 if ins.kind == 'trans' else 1

def schedule(prog, verbose=True):
    prog.deps()
    streams = collections.OrderedDict()
    for ins in prog.L: streams.setdefault(ins.stream, collections.deque()).append(ins)
    order = sorted(streams.keys())
    main = streams[0]
    E = Emitter()
    pending_sync = []
    synced = set()
    fill = 2
    used = 99
    forced = 0
    def do(ins):
        nonlocal used, pending_sync, fill
        k = ins.kind
        ins.done = True
        if k == 'syncp': pending_sync.append(ins.sync); return
        if k == 'syncw':
            if ins.sync not in synced:
                assert ins.sync in pending_sync, ins.sync
                b = I("s_barrier", 'bar', [], [], 4); b.stream = -1
                if verbose: print("note: extra barrier for sync", ins.sync)
                do(b)
            return
        if k == 'fill': fill = ins.fill; return
        if k == 'fence': return
        if k == 'bar':
            ins.need_lgkm = tuple(ins.need_lgkm) + tuple(pending_sync)
            ins.need_vm = tuple(ins.need_vm) + tuple(pending_sync)
            for tg in pending_sync: synced.add(tg)
            pending_sync = []
        n0 = len(E.out)
        E.emit(ins)
        if k in ('mfma16', 'mfma4'): used = 0
        else: used += slots(ins) + (len(E.out) - n0 - 1 if k != 'comment' else 0)
    def blocked(ins):
        if ins.kind == 'syncw' and ins.sync not in synced: return True
        return any(not p.done for p in ins.preds)
    def force(target, depth=0):
        nonlocal forced
        assert depth < 50, "dependency cycle?"
        q = streams[target.stream]
        while not target.done:
            h = q[0]
            for p in h.preds:
                if not p.done: force(p, depth + 1)
            q.popleft(); do(h); forced += 1
    rr = 0
    def fill_side(limit):
        nonlocal rr
        progress = True
        while progress:
            progress = False
            for st in order:
                if st == 0: continue
                q = streams[st]
                while q and q[0].kind in ('syncp', 'syncw', 'comment', 'fence') and not blocked(q[0]):
                    do(q.popleft())
                if not q: continue
                h = q[0]
                if blocked(h) or not E.ready(h): continue
                ismf = h.kind in ('mfma16', 'mfma4')
                cost = slots(h) + (1 if E.needs_wait(h) else 0)
                if ismf:
                    if used < 1 and limit > 0: continue
                    do(q.popleft()); progress = True; break
                if used + cost > limit: continue
                do(q.popleft()); progress = True; break
    while main:
        h = main[0]
        if h.kind in ('mfma16', 'mfma4', 'bar', 'fence', 'waitall'):
            fill_side(fill)
        for p in h.preds:
            if not p.done: force(p)
        main.popleft(); do(h)
    for st in order:
        q = streams[st]
        while q: force(q[-1])
    if verbose:
        c = collections.Counter(i.kind for i in E.out)
        print("instr mix:", dict(c), "nop states", E.nnop, "est cycles", E.t, "forced", forced)
    return E.out

def finalize(out, nop_thresh=4):
    lines = []
    par = 0
    n = len(out)
    mis = 0
    real = [x for x in out]
    i = 0
    def nxt(i):
        j = i + 1
        while j < n and real[j].size == 0: j += 1
        return j
    total = 0
    for i, ins in enumerate(real):
        if ins.size == 0:
            if ins.text: lines.append(ins.text)
            if ins.kind == 'align': par = 0
            continue
        t = ins.text; sz = ins.size
        if ins.flex:
            if par == 4: sz = 4
            else:
                j = nxt(i)
                sz = 4 if (j < n and real[j].size == 4 and not real[j].flex and not _pairs(real, j, n, nxt)) else 8
            t = t.replace("_E ", "_e32 " if sz == 4 else "_e64 ", 1)
        else:
            if sz == 8 and par == 4:
                j = i; run = 0
                while j < n and (real[j].size == 0 or (real[j].size == 8 and not real[j].flex)):
                    if real[j].size: run += 1
                    j += 1
                if run >= nop_thresh and ins.kind != 'label':
                    lines.append("s_nop 0"); par = 0; total += 4
                else: mis += 1
        lines.append(t)
        par = (par + sz) % 8; total += sz
    print("code bytes", total, "misaligned 8B instrs", mis)
    return lines

def _pairs(real, j, n, nxt):
    k = nxt(j)
    return k < n and (real[k].flex or real[k].size == 4)
```

```python
import sys, struct
from fw import *

NAME = "parallel_sum__linear_kernel_hedgehog__dense_activation_relu__prompt"
def f2u(f): return struct.unpack('<I', struct.pack('<f', f))[0]

SLOT = 25344; NSLOT = 5
R1 = NSLOT * SLOT
R2 = R1 + 20480
R3 = R2 + 12288
LDS_BYTES = 163840
WS_EPOCH = 0x0
WS_KVF = 0x1000
WS_PF = 0x4000
WS_PF8 = 0x24000
WS_KV = 0x80000
WS_P = 0x400000
WS_P8 = 0x2400000
WS_DBG = 0x4000000

sW, sS, sR, sPAR, sT = S(3), S(4), S(5), S(6), S(7)
srdX, srdQ, srdW1, srdW2, srdWO, srdO, srdWS, srdPH = [S(8 + 4 * i, 4) for i in range(8)]
def sK1(kk): return 0 if kk == 0 else S(39 + kk)
def sKQ(kk): return 0 if kk == 0 else S(56 + kk)
def sK2(a): return S(57 + a)
sTAG = S(74, 2)
sW1056, sW2112 = S(76), S(77)
sT1OFF = S(78)
sT2, sT3, sT4 = S(79), S(80), S(81)
sM = S(82, 2)
sKA = 84
sM2 = S(84, 2); sM3 = S(86, 2)
sBUD = S(88)
sM2x = S(90, 2); sHM = S(92, 2); sCK = S(94, 2)
sG, sPB, sFB, sOB, sE1, sC1 = S(89), S(96), S(97), S(98), S(99), S(100)
sC2 = S(101)

def aX(T, kk): return A(72 * T + 4 * kk, 4)
NFR = 8
def aFR(n): return A(144 + 4 * (n % NFR), 4)
aSEL0, aSEL1, aONE = A(176, 4), A(180, 4), A(184, 4)
def C(c, k=4): return V(4 * c, k)
def vXN1(kk): return C(kk)
def xn(T, kk): return aX(0, kk) if T == 0 else vXN1(kk)
vLANE, vL, vQn, vQm, vDQ, vDL, vT0, vT1, vT2, vT3 = [V(232 + i) for i in range(10)]
vRS = [V(242), V(243)]
vDH = V(244); vLH = V(245)
vT4, vT5 = V(246), V(247)
vNM = [V(248, 4), V(252, 4)]

PD = 6
PUB_LAT = 1400
sGD, sGR, sGS, sB8, sF8, sOF, sO8, sOF8 = [S(66 + i) for i in range(8)]
sM8, sT5, sT6, sT7, sT8, sT9, sH, sX8, sXO = S(36), S(37), S(38), S(39), S(82), S(83), S(84), S(85), S(86)
vD2b, vDWb, vWLb, vD2, vDW, vWL = vQn, vQm, vDQ, V(242), V(243), V(250)
vL16, vF2, vFR, vXO, vF4 = V(251), V(252), V(253), V(254), V(255)
vFL = V(246, 2)
GSETS = [[13, 14, 15, 16, 41, 43, 17, 45], [5, 6, 7, 8, 9, 10, 11, 12], [0, 1, 2, 3, 4, 47, 33, 35]]
OWN = [V(4 * c, 4) for c in (25, 26, 27, 29)]; OWN8 = [V(4 * c, 4) for c in (30, 31)]
sLOG2E = S(81)
vTAG = V(248, 2)
GATHER_BUFS = [25, 26, 27, 29, 30, 31, 37, 39, 18, 19, 24, 0, 1, 2, 3, 4]

class K:
    def __init__(s, dbg=None, stop=None):
        s.p = Prog(); s.dbg = dbg; s.stop = stop; s.ndump = 0
        s.jobs = []
        s.stages = []

    def dump(s, rl, NREG=512):
        p = s.p
        p.fence(); p.waitall()
        p.raw("s_nop 7", 'nop'); p.raw("s_nop 7", 'nop')
        p.salu('s_lshl_b32', sT, S(2), 2); p.salu('s_add_u32', sT, sT, sW)
        p.salu('s_mul_i32', sT, sT, NREG * 256); p.salu('s_add_u32', sT, sT, WS_DBG)
        p.valu('v_lshlrev_b32', vT0, 2, vLANE)
        for r in rl:
            idx = s.ndump; s.ndump += 1
            if idx % 16 == 0 and idx: p.salu('s_add_u32', sT, sT, 4096)
            p.vst('buffer_store_dword', r, vT0, srdWS, sT, off=(idx % 16) * 256)
        p.waitall()

    def prologue(s):
        p = s.p
        p.raw("s_cmp_ge_u32 s2, 0x100", 'salu', ['s2'], ['scc'], 8)
        p.raw("s_cbranch_scc1 L_end", 'other', ['scc'], [])
        p.raw("s_load_dwordx16 s[84:99], s[0:1], 0", 'smem', [], regs('s', 84, 16), 8)
        p.raw("s_load_dwordx2 s[100:101], s[0:1], 72", 'smem', [], regs('s', 100, 2), 8)
        p.raw("s_getpc_b64 s[82:83]", 'salu', [], ['s82', 's83'])
        p.valu('v_lshlrev_b32', vT0, 7, V(0))
        for i in range(3):
            p.raw("global_load_dword v%d, v%d, s[82:83]" % (vT4.n, vT0.n), 'vld', [str(vT0), 's82', 's83'], [str(vT4)], 8)
            if i < 2: p.valu('v_add_u32', vT0, 0x8000, vT0)
        p.valu('v_and_b32', vLANE, 63, V(0))
        p.valu('v_lshrrev_b32', vT1, 6, V(0))
        p.salu('s_and_b32', sS, S(2), 7)
        p.rfl(sW, vT1)
        p.salu('s_lshl_b32', sS, sS, 1)
        p.salu('s_lshr_b32', sR, S(2), 3)
        p.salu('s_and_b32', sPAR, sR, 1)
        p.salu('s_add_u32', sS, sS, sPAR)
        p.salu('s_lshr_b32', sR, sR, 1)
        p.salu('s_mul_i32', sW1056, sW, 1056)
        p.salu('s_lshl_b32', sW2112, sW1056, 1)
        p.salu('s_mov_b32', sT1OFF, 16 * 1152)
        vG, vR, vC, vTOK = V(200), V(201), V(202), V(203)
        p.valu('v_lshrrev_b32', vG, 4, vLANE)
        p.valu('v_bfe_u32', vR, vLANE, 2, 2)
        p.valu('v_and_b32', vC, 3, vLANE)
        p.valu('v_and_b32', vTOK, 15, vLANE)
        vX = V(204)
        p.salu('s_lshl_b32', sT, sR, 2); p.salu('s_add_u32', sT, sT, sW); p.salu('s_lshl_b32', sT, sT, 5)
        p.valu('v_add_u32', vX, sT, vTOK)
        p.valu('v_mul_u32_u24', vX, 1152, vX)
        p.valu('v_lshl_add_u32', vX, vG, 4, vX)
        p.raw("s_waitcnt lgkmcnt(0)", 'other', regs('s', 84, 18), regs('s', 84, 18))
        def srd(d, ptr, size):
            p.salu('s_mov_b32', d[0], S(ptr)); p.salu('s_and_b32', d[1], S(ptr + 1), 0xffff)
            p.salu('s_mov_b32', d[2], size); p.salu('s_mov_b32', d[3], 0x20000)
        srd(srdX, 84, 2048 * 1152)
        for kk in range(18): p.vld('buffer_load_dwordx4', aX(0, kk), vX, srdX, 0, off=64 * kk, lat=2500)
        srd(srdQ, 86, 576 * 3456); srd(srdW1, 94, 576 * 9216); srd(srdWS, 100, 0x10000000)
        srd(srdPH, 88, 32 * 648); srd(srdW2, 96, 4608 * 1152); srd(srdWO, 90, 576 * 1152); srd(srdO, 98, 2048 * 1152)
        p.raw("s_load_dword s79, s[100:101], 0", 'smem', ['s100', 's101'], ['s79'], 8)
        vP, vU, vA, vB = V(205), V(206), V(207), V(208)
        p.salu('s_and_b32', sT, sW, 1); p.salu('s_lshl_b32', sT, sT, 1)
        p.salu('s_lshr_b32', sT3, sW, 1); p.salu('s_lshl_b32', sT3, sT3, 3); p.salu('s_add_u32', sT, sT, sT3)
        p.valu('v_and_b32', vA, 1, vG); p.valu('v_lshlrev_b32', vA, 2, vA)
        p.valu('v_lshrrev_b32', vB, 1, vG); p.valu('v_lshl_add_u32', vA, vB, 4, vA)
        p.valu('v_add_u32', vA, sT, vA)
        p.valu('v_mul_u32_u24', vDQ, 3456, vA)
        p.valu('v_min_u32', vU, 14, vTOK)
        p.valu('v_mul_u32_u24', vA, 52, vU); p.valu('v_lshrrev_b32', vA, 8, vA)
        p.valu('v_mul_u32_u24', vB, 1152 - 80, vA)
        p.valu('v_lshl_add_u32', vB, vU, 4, vB)
        p.valu('v_add_u32', vDQ, vDQ, vB)
        p.salu('s_mul_i32', sT3, sS, 72); p.salu('s_and_b32', sT3, sT3, 0xfffffff0)
        p.valu('v_add_u32', vDQ, sT3, vDQ)
        p.valu('v_bfe_u32', vA, vLANE, 3, 1)
        p.valu('v_bfe_u32', vB, vLANE, 4, 1); p.valu('v_lshl_add_u32', vA, vB, 2, vA)
        p.valu('v_lshrrev_b32', vB, 5, vLANE); p.valu('v_lshl_add_u32', vA, vB, 4, vA)
        p.valu('v_add_u32', vA, sT, vA)
        p.valu('v_mul_u32_u24', vDL, 9216, vA)
        p.valu('v_and_b32', vB, 7, vLANE); p.valu('v_lshl_add_u32', vDL, vB, 4, vDL)
        p.salu('s_mul_i32', sT3, sS, 576); p.salu('s_lshl_b32', sT4, sPAR, 6); p.salu('s_add_u32', sT3, sT3, sT4)
        p.valu('v_add_u32', vDL, sT3, vDL)
        for kk in range(1, 18):
            p.salu('s_mov_b32', sK1(kk), kk * 32 * 9216); p.salu('s_mov_b32', sKQ(kk), kk * 32 * 3456)
        vPF = V(209)
        p.valu('v_mul_u32_u24', vA, 171, V(0)); p.valu('v_lshrrev_b32', vA, 10, vA)
        p.valu('v_mul_u32_u24', vB, 6, vA); p.valu('v_sub_u32', vB, V(0), vB)
        p.salu('s_mul_i32', sT4, sR, 36)
        p.valu('v_min_u32', vA, 35, vA)
        p.valu('v_add_u32', vA, sT4, vA)
        p.valu('v_mul_u32_u24', vPF, 3456, vA)
        p.valu('v_lshrrev_b32', vU, 1, vB); p.valu('v_mul_u32_u24', vU, 1152, vU); p.valu('v_add_u32', vPF, vPF, vU)
        p.valu('v_and_b32', vB, 1, vB); p.valu('v_mul_u32_u24', vB, 68, vB); p.valu('v_add_u32', vPF, vPF, vB)
        p.salu('s_mul_i32', sT2 if False else sT, sS, 72)
        p.vld('buffer_load_dword', vT4, vPF, srdQ, sT)
        p.valu('v_mul_u32_u24', vA, 205, V(0)); p.valu('v_lshrrev_b32', vA, 10, vA)
        p.valu('v_mul_u32_u24', vB, 5, vA); p.valu('v_sub_u32', vB, V(0), vB)
        p.valu('v_min_u32', vA, 35, vA)
        p.valu('v_add_u32', vA, sT4, vA)
        p.valu('v_mul_u32_u24', vPF, 9216, vA)
        p.valu('v_lshl_add_u32', vPF, vB, 7, vPF)
        p.salu('s_mul_i32', sT, sS, 576)
        p.vld('buffer_load_dword', vT4, vPF, srdW1, sT)
        for kk in range(18): p.vld('buffer_load_dwordx4', aX(1, kk), vX, srdX, sT1OFF, off=64 * kk, lat=3500)
        p.valu('v_and_b32', vA, 1, vG); p.valu('v_lshrrev_b32', vB, 1, vG)
        p.valu('v_mul_u32_u24', vQn, 1056, vR)
        p.valu('v_mul_u32_u24', vU, 4224, vA); p.valu('v_add_u32', vQn, vQn, vU)
        p.valu('v_lshl_add_u32', vQn, vB, 9, vQn)
        p.salu('s_lshl_b32', sT, sPAR, 3); p.salu('s_add_u32', sT, sT, 8448)
        p.valu('v_add_u32', vQn, sT, vQn)
        p.valu('v_min_u32', vU, 2, vC); p.valu('v_mul_u32_u24', vU, 80, vU)
        p.valu('v_add3_u32', vQm, vQn, vU, 64)
        p.valu('v_lshl_add_u32', vQn, vC, 3, vQn)
        p.valu('v_lshrrev_b32', vU, 1, vR); p.valu('v_mul_u32_u24', vL, 1056, vU)
        p.valu('v_mul_u32_u24', vU, 2112, vA); p.valu('v_add_u32', vL, vL, vU)
        p.valu('v_lshl_add_u32', vL, vB, 9, vL)
        p.valu('v_and_b32', vU, 1, vR); p.valu('v_lshl_add_u32', vL, vU, 7, vL)
        p.valu('v_lshl_add_u32', vL, vC, 3, vL)
        for st in range(3):
            for d in s.stage_dmas(st): d()
        p.valu('v_lshrrev_b32', vA, 2, vTOK)
        p.vcmp('v_cmp_eq_u32', sM, vA, vG)
        p.valu('v_and_b32', vB, 1, vTOK); p.valu('v_lshlrev_b32', vB, 4, vB)
        p.valu('v_mov_b32', vU, 0x3f80)
        p.valu('v_lshlrev_b32', vU, vB, vU)
        p.cndmask(vU, 0, vU, sM)
        p.valu('v_and_b32', vB, 2, vTOK)
        p.vcmp('v_cmp_eq_u32', sM2, 0, vB)
        p.valu('v_mov_b32', vP, 0x3f803f80)
        p.cndmask(vA, 0, vU, sM2)
        p.cndmask(vB, vU, 0, sM2)
        p.accw(aSEL0[0], vA); p.accw(aSEL0[1], vB); p.accw(aSEL0[2], 0); p.accw(aSEL0[3], 0)
        p.accw(aSEL1[0], 0); p.accw(aSEL1[1], 0); p.accw(aSEL1[2], vA); p.accw(aSEL1[3], vB)
        for i in range(4): p.accw(aONE[i], vP)
        p.valu('v_and_b32', vB, 1, vTOK)
        p.vcmp('v_cmp_eq_u32', sM3, 0, vB)
        vBP = V(210)
        p.valu('v_lshrrev_b32', vA, 2, vTOK); p.valu('v_lshl_add_u32', vA, vA, 4, vTOK); p.valu('v_lshlrev_b32', vBP, 2, vA)
        ph = [V(212 + 2 * n, 2) for n in range(4)]
        sg = [V(220 + n) for n in range(4)]; tm = [V(224 + n) for n in range(4)]
        p.salu('s_mul_i32', sT, sS, 1296)
        for n in range(4):
            p.valu('v_add_u32', vP, 256 * n, V(0))
            p.valu('v_mul_u32_u24', vA, 3277, vP); p.valu('v_lshrrev_b32', vA, 16, vA)
            p.valu('v_mul_u32_u24', vB, 20, vA); p.valu('v_sub_u32', vB, vP, vB)
            p.valu('v_mul_u32_u24', vU, 36, vA)
            p.valu('v_lshrrev_b32', tm[n], 2, vB)
            p.valu('v_lshl_add_u32', vU, tm[n], 3, vU)
            p.valu('v_bfe_u32', vP, vB, 1, 1); p.valu('v_mul_u32_u24', vP, 18, vP)
            p.valu('v_sub_u32', vP, vA, vP)
            p.vcmp('v_cmp_gt_u32', sM, 18, vP)
            p.valu('v_and_b32', sg[n], 1, vB); p.valu('v_mul_u32_u24', sg[n], 0x8000, sg[n])
            p.valu('v_lshl_add_u32', sg[n], sg[n], 16, sg[n])
            p.cndmask(vU, -1, vU, sM)
            p.valu('v_and_b32', vU, 0x7ffffffc, vU)
            p.vld('buffer_load_dwordx2', ph[n], vU, srdPH, sT, lat=3000)
        s.phi_regs = (ph, sg, tm)
        p.salu('s_mul_i32', sT, sS, 288 * 1152); p.salu('s_mul_i32', sT4, sR, 18 * 1152); p.salu('s_add_u32', sT, sT, sT4)
        p.valu('v_min_u32', vA, 161, V(0)); p.valu('v_lshlrev_b32', vA, 7, vA)
        p.vld('buffer_load_dword', vT4, vA, srdW2, sT)
        p.salu('s_mul_i32', sT, sS, 36 * 1152); p.salu('s_mul_i32', sT4, sR, 21 * 128); p.salu('s_add_u32', sT, sT, sT4)
        p.valu('v_min_u32', vA, 20, V(0)); p.valu('v_lshlrev_b32', vA, 7, vA)
        p.vld('buffer_load_dword', vT4, vA, srdWO, sT)
        s.vBP = vBP
        s.consts(vG, vR, vC, vTOK, vA, vB, vU, vP)
        p.raw("s_waitcnt lgkmcnt(0)", 'other', ['s79'], ['s79'])
        p.salu('s_add_u32', sE1, sT2, 1)
        p.salu('s_mul_i32', sTAG[0], sE1, 0x9E3779B1); p.salu('s_xor_b32', sTAG[0], sTAG[0], 0x5bd1e995)
        p.salu('s_mul_i32', sTAG[1], sE1, 0x85EBCA6B); p.salu('s_add_u32', sTAG[1], sTAG[1], 0xc2b2ae35)
        p.salu('s_mov_b32', sBUD, 200000)

    def stash(s, name, src):
        a = A(188 + len(s.st)); s.st[name] = a
        s.p.accw(a, src)
    def unstash(s, name, dst):
        s.p.accr(dst, s.st[name])
    def consts(s, vG, vR, vC, vTOK, vA, vB, vU, vP):
        p = s.p; s.st = {}
        vG1, vG0, vRow = V(228), V(229), V(230)
        BIG = 0x7ffffff0
        p.valu('v_lshrrev_b32', vG1, 1, vG); p.valu('v_and_b32', vG0, 1, vG)
        p.valu('v_lshl_add_u32', vRow, vG, 2, vR)
        p.valu('v_bfe_u32', vA, vLANE, 2, 3); p.valu('v_lshrrev_b32', vB, 5, vLANE); p.valu('v_lshl_add_u32', vA, vB, 4, vA)
        p.salu('s_and_b32', sT, sW, 1); p.salu('s_lshl_b32', sT, sT, 3); p.salu('s_lshr_b32', sT3, sW, 1); p.salu('s_lshl_b32', sT3, sT3, 5)
        p.salu('s_add_u32', sT, sT, sT3)
        p.valu('v_add_u32', vA, sT, vA); p.valu('v_mul_u32_u24', vA, 9216, vA); p.valu('v_lshl_add_u32', vA, vC, 4, vA)
        p.salu('s_mul_i32', sT, sS, 576); p.salu('s_xor_b32', sT3, sPAR, 1); p.salu('s_lshl_b32', sT3, sT3, 9); p.salu('s_add_u32', sT, sT, sT3)
        p.valu('v_add_u32', vA, sT, vA); s.stash('DH', vA)
        n0 = [i for i, x in enumerate(s.stl) if x[0] == 'LDH'][0]
        p.valu('v_mul_u32_u24', vA, 1056, vG0); p.valu('v_lshl_add_u32', vA, vG1, 9, vA); p.valu('v_lshl_add_u32', vA, vR, 6, vA)
        p.valu('v_lshl_add_u32', vA, vC, 3, vA); p.valu('v_add_u32', vA, (n0 % NSLOT) * SLOT + 16896, vA); s.stash('LH', vA)
        p.valu('v_mul_u32_u24', vA, 160, vRow); p.valu('v_lshl_add_u32', vA, vC, 3, vA); p.valu('v_add_u32', vA, R1, vA); s.stash('PHI', vA)
        p.salu('s_lshr_b32', sT, sW, 1); p.salu('s_lshl_b32', sT, sT, 6)
        p.valu('v_add_u32', vA, sT, vA); s.stash('PK', vA)
        p.valu('v_mul_u32_u24', vA, 160, vR); p.valu('v_lshl_add_u32', vA, vC, 3, vA); p.valu('v_add_u32', vA, R1 + 32 * 160, vA)
        p.valu('v_add_u32', vB, 640, vA)
        p.vcmp('v_cmp_eq_u32', sM, 0, vG); p.cndmask(vU, vB, vA, sM); s.stash('PHq', vU)
        p.vcmp('v_cmp_eq_u32', sM, 1, vG); p.cndmask(vU, vB, vA, sM); s.stash('PHk', vU)
        p.salu('s_lshl_b32', sT, sW, 5)
        p.valu('v_add_u32', vP, sT, vTOK)
        p.valu('v_mul_u32_u24', vA, 160, vP); p.valu('v_mul_u32_u24', vB, 40, vG); p.valu('v_add3_u32', vA, vA, vB, 0)
        p.valu('v_add_u32', vA, R1, vA); s.stash('WPK', vA)
        p.valu('v_mul_u32_u24', vA, 96, vP); p.valu('v_add_u32', vA, R2, vA)
        p.valu('v_lshl_add_u32', vB, vG, 3, vA); s.stash('WV', vB)
        p.valu('v_add_u32', vB, 80, vB); p.valu('v_add_u32', vA, 64, vA)
        p.vcmp('v_cmp_eq_u32', sM, 0, vG1); p.cndmask(vU, vA, vB, sM); s.stash('WVM', vU)
        p.valu('v_mul_u32_u24', vA, 96, vRow); p.valu('v_add_u32', vA, R2, vA)
        p.salu('s_cmp_eq_u32', None, sW, 3); p.salu('s_cselect_b32', sT, 40, 0)
        p.valu('v_lshlrev_b32', vB, 3, vC); p.valu('v_add_u32', vB, sT, vB)
        p.vcmp('v_cmp_eq_u32', sM, 0, vC); p.valu('v_mov_b32', vU, 72); p.cndmask(vU, vU, 32, sM)
        p.salu('s_add_u32', sT, sW, 1); p.salu('s_and_b32', sT, sT, 2); p.salu('s_cmp_eq_u32', None, sT, 2)
        p.salu('s_cselect_b64', sM, -1, 0)
        p.cndmask(vB, vB, vU, sM); p.valu('v_add_u32', vA, vA, vB); s.stash('PV', vA)
        p.salu('s_cmp_eq_u32', None, sW, 3); p.salu('s_cselect_b32', sT, 21, 0)
        p.valu('v_add_u32', vA, sT, vTOK)
        p.salu('s_cmp_eq_u32', None, sW, 1); p.salu('s_cselect_b32', sT, 16, 17); p.salu('s_cselect_b32', sT3, 0, 2); p.salu('s_cselect_b32', sT4, 18, 37)
        p.valu('v_add_u32', vB, sT, vTOK)
        p.valu('v_subrev_u32', vU, sT3, vTOK)
        p.vcmp('v_cmp_gt_u32', sM2x, 2, vU); p.valu('v_mov_b32', vU, 0x200000); p.cndmask(vB, vU, vB, sM2x)
        p.vcmp('v_cmp_eq_u32', sM2x, 4, vTOK); p.valu('v_mov_b32', vU, sT4); p.cndmask(vB, vB, vU, sM2x)
        p.cndmask(vA, vA, vB, sM)
        p.valu('v_mul_u32_u24', vA, 192, vA); p.valu('v_lshl_add_u32', vA, vG, 4, vA); s.stash('KVS', vA)
        for nm in ('1', '2'):
            if nm == '1': p.valu('v_mov_b32', vP, V(0))
            else:
                p.salu('s_mul_i32', sT, sW, 31); p.salu('s_add_u32', sT, sT, 256)
                p.valu('v_and_b32', vP, 31, vLANE); p.valu('v_min_u32', vP, 30, vP); p.valu('v_add_u32', vP, sT, vP)
            p.valu('v_mul_u32_u24', vA, 6554, vP); p.valu('v_lshrrev_b32', vA, 16, vA)
            p.valu('v_mul_u32_u24', vB, 10, vA); p.valu('v_sub_u32', vB, vP, vB)
            p.valu('v_mul_u32_u24', vU, 192, vA); p.valu('v_lshl_add_u32', vU, vB, 4, vU)
            p.vcmp('v_cmp_lt_u32', sM2x, 18, vA); p.valu('v_add_u32', vP, 32, vU); p.cndmask(vU, vU, vP, sM2x)
            if nm == '2':
                p.valu('v_lshrrev_b32', vP, 5, vLANE); p.valu('v_lshl_add_u32', vU, vP, 13, vU)
            s.stash('GG' + nm, vU)
            p.valu('v_mul_u32_u24', vU, 96, vA); p.valu('v_lshl_add_u32', vU, vB, 3, vU)
            p.vcmp('v_cmp_lt_u32', sM2x, 4, vB); p.valu('v_add_u32', vP, 8, vU); p.cndmask(vU, vU, vP, sM2x)
            p.valu('v_add_u32', vU, R3, vU); s.stash('GL' + nm, vU)
        ZR = R3 + 3648
        vGp1, vGp0, vRr = V(231), V(120), V(121)
        p.valu('v_lshrrev_b32', vGp1, 3, vTOK); p.valu('v_bfe_u32', vGp0, vTOK, 2, 1); p.valu('v_and_b32', vRr, 3, vTOK)
        p.valu('v_mul_u32_u24', vP, 48, vG0); p.valu('v_add_u32', vP, R3, vP)
        p.valu('v_mov_b32', vU, ZR)
        p.valu('v_mul_u32_u24', vA, 19, vGp1); p.valu('v_mul_u32_u24', vB, 9, vGp0); p.valu('v_add3_u32', vA, vA, vB, vRr)
        p.valu('v_mul_u32_u24', vA, 96, vA); p.valu('v_add_u32', vA, vA, vP)
        p.vcmp('v_cmp_eq_u32', sM2x, vGp1, vG1); p.cndmask(vA, vU, vA, sM2x); s.stash('NA0', vA)
        p.valu('v_lshrrev_b32', vGp1, 1, vRr); p.valu('v_and_b32', vGp0, 1, vRr)
        p.valu('v_mul_u32_u24', vA, 19, vGp1); p.valu('v_mul_u32_u24', vB, 9, vGp0); p.valu('v_add3_u32', vA, vA, vB, 8)
        p.valu('v_mul_u32_u24', vA, 96, vA); p.valu('v_add_u32', vA, vA, vP)
        p.vcmp('v_cmp_eq_u32', sM2x, vGp1, vG1); p.cndmask(vA, vU, vA, sM2x); s.stash('NA2', vA)
        p.valu('v_mul_u32_u24', vA, 19, vRr); p.valu('v_add_u32', vA, 18, vA)
        p.valu('v_mul_u32_u24', vA, 96, vA); p.valu('v_add_u32', vA, vA, vP)
        p.vcmp('v_cmp_eq_u32', sM2x, vRr, vG1); p.cndmask(vA, vU, vA, sM2x); s.stash('NA3', vA)
        p.salu('s_and_b32', sT, sW, 1); p.salu('s_lshl_b32', sT, sT, 1); p.salu('s_lshr_b32', sT3, sW, 1)
        p.valu('v_bfe_u32', vA, vLANE, 3, 1); p.valu('v_add_u32', vA, sT, vA)
        p.valu('v_lshrrev_b32', vB, 5, vLANE); p.valu('v_lshlrev_b32', vB, 1, vB); p.valu('v_add_u32', vB, sT3, vB)
        p.valu('v_bfe_u32', vU, vLANE, 4, 1)
        p.salu('s_xor_b32', sT4, sPAR, 1); p.salu('s_lshl_b32', sT4, sT4, 6)
        p.valu('v_and_b32', vP, 7, vLANE); p.valu('v_lshlrev_b32', vP, 4, vP); p.valu('v_xor_b32', vP, sT4, vP)
        p.valu('v_lshl_add_u32', vGp1, vU, 4, vA); p.valu('v_lshl_add_u32', vGp1, vB, 2, vGp1)
        p.valu('v_mul_u32_u24', vGp1, 1152, vGp1); p.valu('v_add_u32', vGp1, vGp1, vP); s.stash('D2', vGp1)
        p.valu('v_lshl_add_u32', vGp1, vU, 2, vA); p.valu('v_mul_u32_u24', vB, 9, vB); p.valu('v_add_u32', vGp1, vGp1, vB)
        p.salu('s_mul_i32', sT, sS, 36)
        p.valu('v_add_u32', vGp1, sT, vGp1)
        p.valu('v_mul_u32_u24', vGp1, 1152, vGp1); p.valu('v_add_u32', vGp1, vGp1, vP); s.stash('DW', vGp1)
        p.salu('s_mul_i32', sT3, sW, 9); p.salu('s_add_u32', sT, sT, sT3); p.salu('s_add_u32', sT, sT, 8); p.salu('s_mul_i32', sT, sT, 1152)
        p.valu('v_lshlrev_b32', vA, 4, vLANE); s.stash('L16', vA)
        p.valu('v_xor_b32', vA, sT4, vA); p.valu('v_add_u32', vA, sT, vA); s.stash('DWL', vA)
        p.vcmp('v_cmp_gt_u32', sM2x, 8, vLANE); p.valu('v_mov_b32', vU, BIG); p.cndmask(vA, vU, vA, sM2x); s.stash('DWL2', vA)
        p.valu('v_mul_u32_u24', vA, 2080, vR); p.valu('v_lshl_add_u32', vA, vG, 3, vA); p.valu('v_add_u32', vA, R2, vA); s.stash('WL', vA)
        p.valu('v_lshlrev_b32', vA, 9, vLANE); p.vcmp('v_cmp_gt_u32', sM2x, 2, vLANE); p.cndmask(vA, vU, vA, sM2x); s.stash('F2', vA)
        p.valu('v_lshlrev_b32', vA, 7, vLANE); p.vcmp('v_cmp_gt_u32', sM2x, 4, vLANE); p.cndmask(vA, vU, vA, sM2x); s.stash('F4', vA)
        p.valu('v_lshlrev_b32', vA, 3, vLANE); s.stash('F64', vA)
        p.vcmp('v_cmp_gt_u32', sM2x, 16, vLANE); p.cndmask(vA, vU, vA, sM2x); s.stash('FR', vA)
        p.vcmp('v_cmp_eq_u32', sM2x, 0, vLANE); p.cndmask(vA, vU, 0, sM2x); s.stash('F1', vA)
        p.salu('s_lshl_b32', sT, sR, 2); p.salu('s_add_u32', sT, sT, sW); p.salu('s_lshl_b32', sT, sT, 5)
        p.valu('v_add_u32', vA, sT, vTOK); p.valu('v_mul_u32_u24', vA, 1152, vA); p.valu('v_lshl_add_u32', vA, vG, 3, vA); s.stash('XO', vA)
        p.vcmp('v_cmp_eq_u32', sHM, 1, vG1)

    def build_stages(s):
        st = []
        for i in range(9): st.append(('P1', 2 * i, 2))
        for ps in (1, 2):
            for i in range(3): st.append(('L', ps, 6 * i, 6))
        for i in range(5): st.append(('LDH', 4 * i, 4 if i < 4 else 2))
        for g in range(9):
            st.append(('G2', g, 0)); st.append(('G2', g, 1))
        s.stl = st

    def stage_dmas(s, n):
        p = s.p; base = (n % NSLOT) * SLOT; tag = ('st', n); ST = s.stl[n]
        out = []
        def mk(sw, lds, voff, srd, soff, off=0, pre=None):
            def f(part=2):
                if part in (0, 2):
                    p.salu('s_add_u32', 'm0', sw, lds - off)
                    if pre: pre()
                if part in (1, 2): p.dma(voff, srd, soff, off=off, tag=tag)
            return f
        if ST[0] == 'P1':
            k0 = ST[1]
            for ks in range(2):
                out.append(mk(sW2112, base + 8448 + ks * 8448, vDQ, srdQ, sKQ(k0 + ks)))
                out.append(mk(sW2112, base + 8448 + ks * 8448 + 1056, vDQ, srdQ, sKQ(k0 + ks), off=3456))
                out.append(mk(sW1056, base + ks * 4224, vDL, srdW1, sK1(k0 + ks)))
        elif ST[0] == 'L':
            ps, k0, nk = ST[1:]
            for ks in range(nk):
                pre = None
                if k0 == 0 and ks == 0: pre = lambda: p.valu('v_add_u32', vDL, 128, vDL)
                out.append(mk(sW1056, base + ks * 4224, vDL, srdW1, sK1(k0 + ks), pre=pre))
        elif ST[0] == 'LDH':
            k0, nk = ST[1:]
            for ks in range(nk):
                pre = None
                if k0 == 0 and ks == 0: pre = lambda: p.valu('v_add_u32', vDL, 128, vDL)
                out.append(mk(sW1056, base + ks * 4224, vDL, srdW1, sK1(k0 + ks), pre=pre))
                if ks % 2 == 1:
                    out.append(mk(sW1056, base + 16896 + (ks - 1) * 2112, vDH, srdW1, sK1(k0 + ks - 1)))
        else:
            out = s.g2_dmas(n, mk)
        return out

    def stats_mfma(s, T, kk, dS, dG):
        p = s.p
        p.mfma(dS, aONE, aX(T, kk), 0 if kk == 0 else dS)
        p.mfma(dG, aX(T, kk), aX(T, kk), 0 if kk == 0 else dG)
    def stats_fin(s, T, dS, dG, t):
        p = s.p
        p.cndmask(t[0], dG[1], dG[0], sM3)
        p.cndmask(t[1], dG[3], dG[2], sM3)
        p.cndmask(t[0], t[1], t[0], sM2)
        p.bperm(t[1], s.vBP, t[0])
        p.valu('v_mul_f32', t[2], f2u(1.0 / 576), dS[0])
        p.cvtpk(t[3], 0, t[2])
        for i in range(4): p.valu('v_xor_b32', vNM[T][i], 0x80000000, t[3])
        p.valu('v_mul_f32', t[2], t[2], t[2])
        p.valu('v_mul_f32', t[1], f2u(1.0 / 576), t[1])
        p.valu('v_sub_f32', t[1], t[1], t[2])
        p.valu('v_max_f32', t[1], 0, t[1])
        p.cvtpk(t[1], 0, t[1])
        p.valu('v_add_f32', t[1], f2u(1e-5), t[1])
        p.cvtpk(t[1], 0, t[1])
        p.valu('v_sqrt_f32', t[1], t[1])
        p.cvtpk(t[1], 0, t[1])
        p.valu('v_rcp_f32', vRS[T], t[1])
    def ln(s, T, kk, d0, d1):
        p = s.p
        p.mfma(d0, aSEL0, aX(T, kk), vNM[T])
        p.mfma(d1, aSEL1, aX(T, kk), vNM[T])
        dd = [d0[i] for i in range(4)] + [d1[i] for i in range(4)]
        for r in dd: p.cvtpk(r, 0, r)
        for r in dd: p.valu('v_mul_f32', r, vRS[T], r)
        for j in range(4):
            if T == 1: p.cvtpk(vXN1(kk)[j], dd[2 * j], dd[2 * j + 1])
            else: p.cvtpk(dd[2 * j], dd[2 * j], dd[2 * j + 1])
        if T == 0:
            for j in range(4): p.accw(aX(0, kk)[j], dd[2 * j])

    def p0(s):
        p = s.p
        dS, dG = C(48), C(49); t = C(50)
        for kk in range(18): s.stats_mfma(0, kk, dS, dG)
        s.stats_fin(0, dS, dG, t)
        dS1, dG1 = C(46), C(47)
        p.setfill(12)
        for kk in range(18):
            p.stream(1 + (kk & 1))
            b = 10 + 2 * (kk % 4)
            s.ln(0, kk, C(b), C(b + 1))
            p.stream(0)
            s.stats_mfma(1, kk, dS1, dG1)
        s.stats_fin(1, dS1, dG1, t)
        ph, sg, tm = s.phi_regs
        p.stream(3)
        p.valu('v_lshlrev_b32', vT1, 3, V(0)); p.valu('v_add_u32', vT1, R1, vT1)
        for n in range(4):
            p.vcmp('v_cmp_gt_u32', sM, 4, tm[n])
            p.valu('v_xor_b32', ph[n][0], sg[n], ph[n][0])
            p.valu('v_xor_b32', ph[n][1], sg[n], ph[n][1])
            p.cndmask(ph[n][1], 0, ph[n][1], sM)
            p.dsw('ds_write_b64', vT1, ph[n], off=2048 * n, tag='phiw')
        p.valu('v_and_b32', vT1, 127, V(0)); p.valu('v_mul_u32_u24', vT1, 96, vT1); p.valu('v_add_u32', vT1, R2 + 72, vT1)
        p.valu('v_mov_b32', ph[0][0], 0x3f80); p.valu('v_mov_b32', ph[0][1], 0)
        p.dsw('ds_write_b64', vT1, ph[0], tag='phiw')
        p.valu('v_min_u32', vT1, 59, V(0)); p.valu('v_lshlrev_b32', vT1, 3, vT1); p.valu('v_add_u32', vT1, R3 + 3648, vT1)
        p.valu('v_mov_b32', ph[1][0], 0); p.valu('v_mov_b32', ph[1][1], 0)
        p.dsw('ds_write_b64', vT1, ph[1], tag='phiw')
        p.sync_post('phiw')
        p.stream(0)

    def add_job(s, stage, rd, mf, pre=None, side=None, post=None):
        s.jobs.append(dict(stage=stage, rd=rd, mf=mf, pre=pre, side=side, post=post))

    def qacc(s, t, T): return C(18 + 2 * t + T)
    def pacc(s, ps, t, T):
        a, par = t >> 1, t & 1
        i = 2 * a + T
        if ps == 0: return C(32 + 2 * i + par)
        if ps == 1: return C(40 + 2 * i + par)
        if ps == 2: return C(48 + i) if par == 0 else C(33 + 2 * i)
        if ps == 3: return C(52 + i) if par == 0 else C(41 + 2 * i)
        if ps == 4: return C(56 + T) if par == 0 else C(33 + 2 * T)
    def hfrag(s, a, T):
        return s.pacc(a >> 1, 2 * (a & 1), T)
    def hconv(s, ps, a, T):
        p = s.p
        c0, c1 = s.pacc(ps, 2 * a, T), s.pacc(ps, 2 * a + 1, T)
        p.cvtpk(c0[0], c0[0], c0[1]); p.cvtpk(c0[1], c0[2], c0[3]); p.cvtpk(c0[2], c1[0], c1[1]); p.cvtpk(c0[3], c1[2], c1[3])
        for j in range(4): p.valu('v_pk_max_i16', c0[j], c0[j], 0)

    def p1_jobs(s):
        p = s.p
        tiles = [(0, 0), (0, 4), (1, 0), (1, 4), None, (2, 0), (2, 4)]
        order = [2, 3, 4, 5, 6, 0, 1, 7, 8, 9, 10]
        for st in range(9):
            for ks in range(2):
                kk = 2 * st + ks
                for ti, t in enumerate(order):
                    if t < 7:
                        if tiles[t] is None: rd = [(vQm, ks * 8448 + u * 256) for u in range(2)]
                        else: rd = [(vQn, ks * 8448 + u * 256 + tiles[t][0] * 80 + tiles[t][1] * 8) for u in range(2)]
                        acc = [s.qacc(t, T) for T in range(2)]
                    else:
                        rd = [(vL, ks * 4224 + u * 256 + 32 * (t - 7)) for u in range(2)]
                        acc = [s.pacc(0, t - 7, T) for T in range(2)]
                    side = None; post = None
                    if ti == 0:
                        def side(kk=kk):
                            p.stream(1 + (kk & 1))
                            b = 40 + 2 * (kk % 4)
                            s.ln(1, kk, C(b), C(b + 1))
                            p.stream(0)
                    if kk == 14 and ti == 1: post = s.att_pre
                    if kk == 17 and ti == 6: post = s.att
                    if kk == 17 and t in (8, 10): post = s.conv_hook(0, (t - 7) >> 1)
                    s.add_job(st, rd, [(acc[T], xn(T, kk), kk == 0) for T in range(2)], side=side, post=post)

    def conv_hook(s, ps, a):
        def f():
            s.p.stream(2)
            for T in range(2): s.hconv(ps, a, T)
            s.p.stream(0)
        return f

    def p3_jobs(s):
        p = s.p
        for n, ST in enumerate(s.stl):
            if ST[0] == 'L':
                ps, k0, nk = ST[1:]
                for ks in range(nk):
                    kk = k0 + ks
                    for t in range(4):
                        rd = [(vL, ks * 4224 + u * 256 + 32 * t) for u in range(2)]
                        post = s.conv_hook(ps, t >> 1) if (kk == 17 and t & 1) else None
                        side = s.hooks.get((ps, kk)) if t == 0 else None
                        s.add_job(n, rd, [(s.pacc(ps, t, T), xn(T, kk), kk == 0) for T in range(2)], post=post, side=side)
            if ST[0] == 'LDH':
                k0, nk = ST[1:]
                for ks in range(nk):
                    kk = k0 + ks
                    for t in range(6):
                        if t < 4:
                            rd = [(vL, ks * 4224 + u * 256 + 32 * t) for u in range(2)]; ps, tt = 3, t
                        else:
                            rd = [(vLH, ks * 2112 + u * 256 + 32 * (t - 4)) for u in range(2)]; ps, tt = 4, t - 4
                        post = s.conv_hook(ps, tt >> 1) if (kk == 17 and t & 1) else None
                        side = s.hooks.get((3, kk)) if t == 0 else None
                        s.add_job(n, rd, [(s.pacc(ps, tt, T), xn(T, kk), kk == 0) for T in range(2)], post=post, side=side)

    def aPH(s, tau): return A(72 + 8 * tau, 4), A(76 + 8 * tau, 2), A(78 + 8 * tau, 2)
    def att_pre(s):
        p = s.p; p.stream(3)
        p.sync_wait('phiw')
        a0, a1, a2 = vT1, vT2, vT3
        s.unstash('PHI', a0); s.unstash('PHq', a1); s.unstash('PHk', a2)
        for tau in range(5):
            f32, fq, fk = s.aPH(tau)
            p.dsr('ds_read_b64_tr_b16', f32.sub(0, 2), a0, 32 * tau, tag='phir')
            p.dsr('ds_read_b64_tr_b16', f32.sub(2, 2), a0, 2560 + 32 * tau, tag='phir')
            p.dsr('ds_read_b64_tr_b16', fq, a1, 32 * tau, tag='phir')
            p.dsr('ds_read_b64_tr_b16', fk, a2, 32 * tau, tag='phir')
        p.sync_post('phir')
        s.unstash('DH', vDH); s.unstash('LH', vLH)
        p.stream(0)
    def mixb(s, T): return C(26).sub(2 * T, 2)
    def pack2(s, c0, c1):
        p = s.p
        p.cvtpk(c0[0], c0[0], c0[1]); p.cvtpk(c0[1], c0[2], c0[3]); p.cvtpk(c0[2], c1[0], c1[1]); p.cvtpk(c0[3], c1[2], c1[3])
    def feat(s, which, T, D):
        p = s.p
        b32 = s.qacc(0 if which == 'q' else 2, T); b16 = s.mixb(T)
        for tau in range(5):
            f32, fq, fk = s.aPH(tau)
            p.mfma(D[tau], f32, b32, 0)
        for tau in range(5):
            f32, fq, fk = s.aPH(tau)
            p.mfma(D[tau], fq if which == 'q' else fk, b16, D[tau], shape='16x16x16')
    def softmax(s, D, tmp, dst):
        p = s.p
        x = [D[i >> 2][i & 3] for i in range(18)]
        m, sm, r = tmp[0], tmp[1], tmp[2]
        p.valu('v_max3_f32', m, x[0], x[1], x[2])
        p.valu('v_max3_f32', r, x[3], x[4], x[5])
        for i in range(6, 18, 4):
            p.valu('v_max3_f32', m, x[i], x[i + 1], m)
            p.valu('v_max3_f32', r, x[i + 2], x[i + 3], r)
        p.valu('v_max_f32', m, m, r)
        p.cvtpk(m, 0, m)
        p.valu('v_mul_f32', m, sLOG2E, m)
        for i in range(18): p.cvtpk(x[i], 0, x[i])
        for i in range(18): p.valu('v_fma_f32', x[i], x[i], sLOG2E, '-' + str(m))
        for i in range(18):
            p.valu('v_exp_f32', x[i], x[i])
            if i == 2: p.valu('v_add_f32', sm, x[0], x[1])
            if i == 4: p.valu('v_add_f32', r, x[2], x[3])
            if i >= 5: p.valu('v_add_f32', sm if i & 1 else r, x[i - 1], sm if i & 1 else r)
        p.valu('v_add_f32', sm, sm, r)
        p.valu('v_add_f32', sm, x[17], sm)
        p.valu('v_rcp_f32', r, sm)
        for i in range(18): p.valu('v_mul_f32', x[i], r, x[i])
        for j in range(9): p.cvtpk(dst[j], x[2 * j], x[2 * j + 1])
        p.valu('v_mov_b32', dst[9], 0)
    def att(s):
        p = s.p
        X = [C(c) for c in (20, 21, 24, 25, 30)]; Y = [C(c) for c in (48, 49, 50, 51, 52)]; Z = [C(c) for c in (53, 54, 55, 56, 57)]
        p.stream(3)
        p.salu('s_mov_b32', sLOG2E, f2u(1.4426950408889634))
        for T in range(2):
            s.pack2(s.qacc(2, T), s.qacc(3, T))
            mx = s.qacc(4, T); md = s.mixb(T); p.cvtpk(md[0], mx[0], mx[1]); p.cvtpk(md[1], mx[2], mx[3])
        for T in range(2): s.pack2(s.qacc(5, T), s.qacc(6, T))
        for T in range(2): s.pack2(s.qacc(0, T), s.qacc(1, T))
        s.feat('k', 0, X); s.feat('k', 1, Y)
        s.unstash('WV', vT1); s.unstash('WVM', vT2)
        for T in range(2):
            v = s.qacc(5, T)
            p.dsw('ds_write_b64', vT1, v.sub(0, 2), off=T * 1536, tag='img')
            p.dsw('ds_write_b64', vT1, v.sub(2, 2), off=T * 1536 + 32, tag='img')
            p.dsw('ds_write_b64', vT2, s.mixb(T), off=T * 1536, tag='img')
        s.unstash('WPK', vT3)
        p.sync_wait('phir')
        for T, D, st in ((0, X, 3), (1, Y, 4)):
            p.stream(st)
            tmp = C(31) if T == 0 else C(29)
            dst = [D[j >> 2][j & 3] for j in range(10)]
            s.softmax(D, tmp, dst)
            for i in range(5):
                p.dsw('ds_write_b64', vT3, R('v', dst[2 * i].n, 2), off=T * 2560 + 8 * i, tag='img', xwr=['imgtok%d' % T])
        p.stream(3)
        s.unstash('PK', vT1); s.unstash('PV', vT2)
        p.sync_post('img', xrd=['imgtok0', 'imgtok1'])
        p.stream(4)
        s.feat('q', 0, Z)
        s.phq = [[C(22), C(23), C(28).sub(0, 2)], [C(20), C(21), C(28).sub(2, 2)]]
        def dsts(T): return [s.phq[T][j >> 2][j & 3] for j in range(10)]
        s.softmax(Z, C(29), dsts(0))
        s.feat('q', 1, X)
        s.softmax(X, C(29), dsts(1))
        p.stream(3)
        p.sync_wait('img')
        KD = [C(27), C(31), C(52)]
        for ka in range(4):
            fb = 112 + 16 * (ka & 1)
            for u in range(2): p.dsr('ds_read_b64_tr_b16', A(fb + 2 * u, 2), vT2, ka * 3072 + u * 1536, tag='imgr')
            for j in range(3):
                for u in range(2): p.dsr('ds_read_b64_tr_b16', A(fb + 4 + 4 * j + 2 * u, 2), vT1, ka * 5120 + u * 2560 + 32 * j, tag='imgr')
            if ka >= 1: s.kv_mfma(ka - 1, KD)
        s.kv_mfma(3, KD)
        p.sync_post('imgr')
        s.unstash('KVS', vT1); s.unstash('F1', vT2)
        p.salu('s_lshl_b32', sC1, sS, 4); p.salu('s_add_u32', sC1, sC1, sR)
        p.salu('s_lshl_b32', sC2, sC1, 13); p.salu('s_add_u32', sC2, sC2, WS_KV)
        for j in range(3): p.vst('buffer_store_dwordx4', KD[j], vT1, srdWS, sC2, off=64 * j, flags='sc1', tag='kvst')
        p.salu('s_lshl_b32', sC1, sC1, 2); p.salu('s_add_u32', sC1, sC1, sW); p.salu('s_lshl_b32', sC1, sC1, 3); p.salu('s_add_u32', sC1, sC1, WS_KVF)
        p.valu('v_mov_b32', vTAG[0], sTAG[0]); p.valu('v_mov_b32', vTAG[1], sTAG[1])
        p.vst('buffer_store_dwordx2', vTAG, vT2, srdWS, sC1, flags='sc1', need_vm=['kvst'])
        p.stream(0)
    def kv_mfma(s, ka, KD):
        fb = 112 + 16 * (ka & 1)
        for j in range(3): s.p.mfma(KD[j], A(fb + 4 + 4 * j, 4), A(fb, 4), 0 if ka == 0 else KD[j])

    def check(s, voff, soff, vF, shift, mask, lat=1200):
        p = s.p; n = s.nchk; s.nchk += 1
        ld = "buffer_load_dwordx2 %s, %s, %s, %s offen sc1" % (vF, voff, srdWS, soff)
        p.vld('buffer_load_dwordx2', vF, voff, srdWS, soff, flags='sc1', lat=lat)
        cmp = "v_cmp_eq_u64_e64 %s, %s, %s" % (sCK, vF, sTAG)
        p.vcmp('v_cmp_eq_u64', sCK, vF, sTAG)
        if mask is None: tst = ["s_cmp_lg_u64 %s, -1" % sCK]
        elif shift is None: tst = ["s_andn2_b32 %s, %s, %s" % (sCK[1], mask, sCK[0])]
        else: tst = ["s_lshr_b32 %s, %s, %s" % (sCK[0], sCK[0], shift), "s_andn2_b32 %s, %d, %s" % (sCK[1], mask, sCK[0])]
        sz = 4 * len(tst) + 4
        rd = sCK.regs() + oregs(shift) + oregs(mask) + vF.regs() + oregs(voff) + oregs(soff) + srdWS.regs() + sTAG.regs() + sBUD.regs()
        p.raw("\n  ".join(tst + ["s_cbranch_scc1 Lslow%d" % n]) + "\nLret%d:" % n, 'salu', rd, sCK.regs() + vF.regs() + sBUD.regs() + ['chk'], sz)
        p.tail += ["Lslow%d:" % n, "  s_cmp_eq_u32 %s, 0" % sBUD, "  s_cbranch_scc1 Lret%d" % n, "  s_sub_u32 %s, %s, 1" % (sBUD, sBUD),
                   "  " + ld, "  s_waitcnt vmcnt(0)", "  " + cmp, "  s_nop 1"] + ["  " + t for t in tst] + ["  s_cbranch_scc1 Lslow%d" % n, "  s_branch Lret%d" % n]

    def gate(s, name):
        s.p.add(I("", 'comment', [], ['gate_' + name], 0))
    def gated(s, name):
        s.p.add(I("", 'comment', ['gate_' + name], [], 0))
    def kv_gather(s):
        p = s.p; p.stream(3)
        s.gated('kvg')
        s.unstash('F64', vT1)
        p.salu('s_lshl_b32', sC1, sS, 9); p.salu('s_add_u32', sC1, sC1, WS_KVF)
        s.check(vT1, sC1, V(246, 2), None, None)
        s.unstash('GG1', vT1); s.unstash('GG2', vT2)
        p.salu('s_lshl_b32', sC2, sS, 17); p.salu('s_add_u32', sC2, sC2, WS_KV)
        bufs = [C(c) for c in GATHER_BUFS]
        ab = [A(112 + 4 * i, 4) for i in range(8)]
        for i in range(8):
            p.vld('buffer_load_dwordx4', bufs[2 * i], vT1, srdWS, sC2, flags='sc1', xrd=['chk'], lat=1500)
            p.vld('buffer_load_dwordx4', ab[i], vT2, srdWS, sC2, flags='sc1', xrd=['chk'], lat=1500)
            p.salu('s_add_u32', sC2, sC2, 8192)
            p.vld('buffer_load_dwordx4', bufs[2 * i + 1], vT1, srdWS, sC2, flags='sc1', xrd=['chk'], lat=1500)
            if i < 7: p.salu('s_add_u32', sC2, sC2, 8192)
        s.unstash('GL1', vT1); s.unstash('GL2', vT2)
        a1, a2 = bufs[0], bufs[2]
        for i in range(8):
            for b in (bufs[2 * i], bufs[2 * i + 1]):
                if b is a1: continue
                for j in range(4): p.valu('v_add_f32', a1[j], b[j], a1[j])
            if i == 1:
                for j in range(4): p.accr(a2[j], ab[0][j])
            if i >= 1:
                for j in range(4): p.accr(bufs[1][j], ab[i][j])
                for j in range(4): p.valu('v_add_f32', a2[j], bufs[1][j], a2[j])
        t = bufs[1]
        for j in range(4): p.valu('v_mov_b32', t[j], a2[j])
        for j in range(4):
            p.add(I("v_permlane32_swap_b32_e32 %s, %s" % (t[j], a2[j]), 'valu', [str(t[j]), str(a2[j]), 'exec'], [str(t[j]), str(a2[j])], 4))
        for j in range(4): p.valu('v_add_f32', a2[j], t[j], a2[j])
        for acc, ad in ((a1, vT1), (a2, vT2)):
            p.cvtpk(acc[0], acc[0], acc[1]); p.cvtpk(acc[1], acc[2], acc[3])
            p.dsw('ds_write_b64', ad, acc.sub(0, 2), tag='kvb')
        p.sync_post('kvb')
        s.unstash('NA0', vT1); s.unstash('NA2', vT2); s.unstash('NA3', vT3)
        p.sync_wait('kvb')
        def nf(tau): return A(72 + 10 * tau, 4), A(76 + 10 * tau, 4), A(80 + 10 * tau, 2)
        for tau in range(4):
            ad, off = [(vT1, 0), (vT1, 384), (vT2, 0), (vT3, 0)][tau]
            f0, f1, f2 = nf(tau)
            p.dsr('ds_read_b128', f0, ad, off); p.dsr('ds_read_b128', f1, ad, off + 16); p.dsr('ds_read_b64', f2, ad, off + 32)
        ND = [[bufs[4 + tau] for tau in range(4)], [bufs[12 + tau] for tau in range(4)]]
        for T in range(2):
            for sg in range(3):
                for tau in range(4):
                    p.mfma(ND[T][tau], nf(tau)[sg], s.phq[T][sg], 0 if sg == 0 else ND[T][tau], shape='16x16x32' if sg < 2 else '16x16x16')
        for T in range(2):
            p.stream(3 + T)
            D = ND[T]
            d0, d1, ro = D[3][0], D[3][1], D[3][2]
            for d in (d0, d1): p.cvtpk(d, 0, d)
            for d in (d0, d1): p.valu('v_add_f32', d, f2u(1e-6), d)
            for d in (d0, d1): p.cvtpk(d, 0, d)
            for d in (d0, d1): p.valu('v_rcp_f32', d, d)
            x = [D[i >> 2][i & 3] for i in range(12)]
            for r_ in x: p.cvtpk(r_, 0, r_)
            p.cndmask(ro, d0, d1, sHM)
            for i in range(8): p.valu('v_mul_f32', x[i], ro, x[i])
            for i in range(8, 12): p.valu('v_mul_f32', x[i], d0 if i < 10 else d1, x[i])
            for j in range(4): p.cvtpk(s.of32[T][j], x[2 * j], x[2 * j + 1])
            for j in range(2): p.cvtpk(s.of4[T][j], x[8 + 2 * j], x[9 + 2 * j])
        p.stream(0)

    def g2_setup(s):
        p = s.p; p.stream(5)
        p.salu('s_lshr_b32', sH, sS, 1)
        p.salu('s_mul_i32', sT5, sS, 288)
        for a in range(9):
            if a < 8:
                p.salu('s_add_u32', sT6, sPAR, a); p.salu('s_lshl_b32', sT6, sT6, 5)
            else:
                p.salu('s_xor_b32', sT6, sPAR, 1); p.salu('s_lshl_b32', sT6, sT6, 8)
            p.salu('s_add_u32', sT6, sT6, sT5); p.salu('s_mul_i32', sK2(a), sT6, 1152)
        s.unstash('D2', vD2b); s.unstash('DW', vDWb); s.unstash('WL', vWLb); s.unstash('L16', vL16)
        s.unstash('F2', vF2); s.unstash('FR', vFR); s.unstash('XO', vXO)
        p.salu('s_xor_b32', sT6, sPAR, 1)
        p.salu('s_lshl_b32', sPB, sR, 21); p.salu('s_lshl_b32', sT5, sW, 15); p.salu('s_add_u32', sPB, sPB, sT5); p.salu('s_add_u32', sPB, sPB, WS_P)
        p.salu('s_lshl_b32', sT5, sS, 17); p.salu('s_add_u32', sOB, sPB, sT5)
        p.salu('s_lshl_b32', sT5, sS, 11); p.salu('s_add_u32', sPB, sPB, sT5)
        p.salu('s_lshl_b32', sT5, sT6, 17); p.salu('s_add_u32', sPB, sPB, sT5)
        p.salu('s_lshl_b32', sFB, sR, 13); p.salu('s_lshl_b32', sT5, sW, 7); p.salu('s_add_u32', sFB, sFB, sT5); p.salu('s_add_u32', sFB, sFB, WS_PF)
        p.salu('s_lshl_b32', sT5, sS, 9); p.salu('s_add_u32', sOF, sFB, sT5)
        p.salu('s_lshl_b32', sT5, sS, 3); p.salu('s_add_u32', sFB, sFB, sT5)
        p.salu('s_lshl_b32', sB8, sR, 18); p.salu('s_add_u32', sB8, sB8, WS_P8)
        p.salu('s_lshl_b32', sT5, sS, 14); p.salu('s_add_u32', sO8, sB8, sT5)
        p.salu('s_lshl_b32', sT5, sW, 16); p.salu('s_add_u32', sB8, sB8, sT5)
        p.salu('s_lshl_b32', sT5, sS, 10); p.salu('s_add_u32', sB8, sB8, sT5)
        p.salu('s_lshl_b32', sT5, sT6, 15); p.salu('s_add_u32', sB8, sB8, sT5)
        p.salu('s_lshl_b32', sF8, sR, 11); p.salu('s_add_u32', sF8, sF8, WS_PF8)
        p.salu('s_lshl_b32', sT5, sS, 7); p.salu('s_add_u32', sOF8, sF8, sT5)
        p.salu('s_lshl_b32', sT5, sW, 9); p.salu('s_add_u32', sF8, sF8, sT5)
        p.salu('s_lshl_b32', sT5, sS, 3); p.salu('s_add_u32', sF8, sF8, sT5)
        p.salu('s_lshr_b32', sT5, sS, 2)
        p.salu('s_and_b32', sT6, sS, 3); p.salu('s_lshl_b32', sT6, sT6, 5); p.salu('s_add_u32', sT6, sT6, 1024)
        p.raw("s_cmp_eq_u32 %s, %s\n  s_cselect_b32 %s, %s, 0x7ffffff0\n  s_cselect_b32 %s, 0xffff, 0\n  s_cselect_b32 %s, %s, 0x7ffffff0" %
              (sT5, sW, sO8, sO8, sM8, sX8, sT6), 'salu', [str(sT5), str(sW), str(sO8), str(sT6)], [str(sO8), str(sM8), str(sX8)], 28)
        p.salu('s_lshl_b32', sXO, sS, 6)
        p.stream(0)

    def wol(s):
        p = s.p
        s.unstash('DWL', vD2); s.unstash('DWL2', vDW)
        p.sync_wait('imgr')
        p.salu('s_mul_i32', sT, sW, 2080)
        p.salu('s_add_u32', 'm0', sT, R2)
        for i, v in enumerate((vD2, vDW)):
            p.dma(v, srdWO, 0, off=1024 * i, tag='wol')
        p.sync_post('wol')
    def gamma(s, dst, gi, sh):
        p = s.p
        if gi == 0: p.salu('s_mov_b32', dst, 8 << sh)
        else:
            p.salu('s_add_u32', dst, sH, gi); p.salu('s_and_b32', dst, dst, 7); p.salu('s_lshl_b32', dst, dst, sh)

    def g2_dmas(s, n, mk):
        p = s.p; base = (n % NSLOT) * SLOT
        _, gi, half = s.stl[n]
        out = []
        def pre():
            s.gamma(sGD, gi, 7)
            p.valu('v_add_u32', vD2, sGD, vD2b); p.valu('v_add_u32', vDW, sGD, vDWb)
        for ks in range(5):
            a = 5 * half + ks
            if a < 9: out.append(mk(sW1056, base + ks * 4224, vD2, srdW2, sK2(a), pre=pre if a == 0 else None))
            else: out.append(mk(sW1056, base + ks * 4224, vDW, srdWO, 0))
        return out

    def gacc(s, gi, t, T):
        if gi == 8 and t >= 2: return OWN[2 * (t - 2) + T]
        return C(GSETS[gi % 3][2 * t + T])

    def g2_jobs(s):
        p = s.p
        n0 = [i for i, x in enumerate(s.stl) if x[0] == 'G2'][0]
        for gi in range(9):
            n = n0 + 2 * gi
            def step(stage, a, t, pre=None, post=None, side=None):
                ks = a % 5
                own = (gi == 8 and t >= 2)
                if a < 10:
                    rd = [(vL, ks * 4224 + u * 256 + 32 * t) for u in range(2)]
                    mf = [(s.gacc(gi, t, T), s.hfrag(a, T) if a < 9 else s.of32[T], a == 0 and not own) for T in range(2)]
                else:
                    rd = [(vWL, 32 * t)]
                    mf = [(s.gacc(gi, t, T), s.of4[T], False, '4x4x4_16b') for T in range(2)]
                s.add_job(stage, rd, mf, pre=pre, post=post, side=side)
            def wlpre(gi=gi):
                s.gamma(sGR, gi, 7); p.valu('v_add_u32', vWL, sGR, vWLb)
                if gi == 0:
                    p.sync_wait('wol')
            if gi < 8:
                for a in range(11):
                    for t in range(4):
                        post = None
                        if a == 10 and gi == 0: post = s.pub8(t)
                        elif a == 10 and t & 1: post = s.pub(gi, t >> 1)
                        side = s.hooks.get(('g', gi)) if (a == 0 and t == 0) else None
                        step(n + (1 if a >= 5 else 0), a, t, pre=wlpre if (a == 9 and t == 0) else None, post=post, side=side)
            else:
                d = ((n + 1) % NSLOT - n % NSLOT) * SLOT
                for lp in range(2):
                    for a in range(11):
                        for t in (2 * lp, 2 * lp + 1):
                            pre = None; post = None
                            if lp == 0 and a == 9 and t == 0: pre = wlpre
                            if lp == 1 and a == 0 and t == 2: pre = lambda: p.valu('v_add_u32', vL, (-d) & 0xffffffff, vL)
                            if lp == 1 and a == 5 and t == 2: pre = lambda: p.valu('v_add_u32', vL, d & 0xffffffff, vL)
                            if lp == 0 and a == 10 and t == 1: post = s.pub(gi, 0)
                            if lp == 1 and a == 10 and t == 3: post = s.finish
                            side = s.hooks.get(('g', gi + lp)) if (a == 0 and t == 2 * lp) else None
                            step(n + (1 if (a >= 5 or lp == 1) else 0), a, t, pre=pre, post=post, side=side)

    def pub(s, gi, lp):
        def f():
            p = s.p; p.stream(5)
            if lp == 0:
                s.gamma(sGS, gi, 18); p.salu('s_add_u32', sT5, sGS, sPB)
            else: p.salu('s_xor_b32', sT5, sT5, 0x20000)
            for T in range(2):
                c0, c1 = s.gacc(gi, 2 * lp, T), s.gacc(gi, 2 * lp + 1, T)
                s.pack2(c0, c1)
                p.vst('buffer_store_dwordx4', c0, vL16, srdWS, sT5, off=1024 * T, flags='sc1', tag=('pub', gi), xwr=['pubtok%d' % gi]).lat = PUB_LAT
            if lp == 1 or gi == 8:
                p.stream(7)
                if gi < 8:
                    s.gamma(sT7, gi, 10); p.salu('s_add_u32', sT7, sT7, sFB)
                    p.vst('buffer_store_dwordx2', vTAG, vF2, srdWS, sT7, flags='sc1', need_vm=[('pub', gi)], xrd=['pubtok%d' % gi], xwr=['gate_f%d' % gi])
                else:
                    s.unstash('F1', vF2)
                    p.salu('s_xor_b32', sT7, sS, 1); p.salu('s_lshl_b32', sT7, sT7, 9); p.salu('s_add_u32', sT7, sT7, sFB)
                    p.vst('buffer_store_dwordx2', vTAG, vF2, srdWS, sT7, flags='sc1', need_vm=[('pub', gi)], xrd=['pubtok%d' % gi], xwr=['gate_f%d' % gi])
            p.stream(0)
        return f
    def pub8(s, t):
        def f():
            p = s.p; p.stream(5)
            c0, c1 = s.gacc(0, t, 0), s.gacc(0, t, 1)
            s.pack2(c0, c1)
            p.salu('s_xor_b32', sT5, sB8, t << 14)
            p.vst('buffer_store_dwordx4', c0, vL16, srdWS, sT5, flags='sc1', tag=('pub', 0), xwr=['pubtok0']).lat = PUB_LAT
            if t == 3:
                p.stream(7)
                s.unstash('F4', vF4)
                p.vst('buffer_store_dwordx2', vTAG, vF4, srdWS, sF8, flags='sc1', need_vm=[('pub', 0)], xrd=['pubtok0'], xwr=['gate_f0'])
            p.stream(0)
        return f
    def selacc(s, d0, d1, b, zero=False):
        s.p.mfma(d0, aSEL0, b, 0 if zero else d0); s.p.mfma(d1, aSEL1, b, 0 if zero else d1)
    def rbuf(s):
        b = A(4 * (s.nrb % 18), 4); s.nrb += 1; return b
    def recv_x(s):
        p = s.p; p.stream(6)
        bs = []
        for T in range(2):
            b = s.rbuf(); bs.append(b)
            if T == 1: p.salu('s_add_u32', sT8, sXO, sT1OFF)
            for t in range(2): p.vld('buffer_load_dwordx2', b.sub(2 * t, 2), vXO, srdX, sXO if T == 0 else sT8, off=32 * t, lat=1000)
        b8 = s.rbuf()
        p.vld('buffer_load_dwordx2', b8.sub(0, 2), vXO, srdX, sX8, lat=1000)
        p.salu('s_add_u32', sT8, sX8, sT1OFF)
        p.vld('buffer_load_dwordx2', b8.sub(2, 2), vXO, srdX, sT8, lat=1000)
        for T in range(2): s.selacc(OWN[T], OWN[2 + T], bs[T], True)
        s.selacc(OWN8[0], OWN8[1], b8, True)
        p.stream(0)
    def recv_loads(s, gp):
        p = s.p
        s.gated('f%d' % gp)
        p.salu('s_sub_u32', sT8, sH, gp); p.salu('s_and_b32', sT8, sT8, 7)
        bs = []
        if gp < 8:
            p.salu('s_lshl_b32', sT9, sT8, 1)
            s.check(vFR, sOF, vFL, sT9, 3)
            p.salu('s_lshl_b32', sT8, sT8, 12); p.salu('s_add_u32', sT8, sT8, sOB)
            n = 4
        else:
            p.salu('s_xor_b32', sT9, sS, 1)
            s.check(vFR, sOF, vFL, sT9, 1)
            p.salu('s_lshl_b32', sT8, sT9, 11); p.salu('s_add_u32', sT8, sT8, sOB)
            n = 2
        for i in range(n):
            b = s.rbuf(); bs.append(b)
            p.vld('buffer_load_dwordx4', b, vL16, srdWS, sT8, off=1024 * i, flags='sc1', xrd=['chk'], lat=1200)
        return bs
    def recv_acc(s, bs):
        for i, b in enumerate(bs): s.selacc(OWN[i & 1], OWN[2 + (i & 1)], b)
    def recv(s, gp):
        def f():
            p = s.p; s.gate('r%d' % gp); p.stream(6); s.gated('r%d' % gp)
            s.recv_acc(s.recv_loads(gp)); p.stream(0)
        return f
    def recv8(s):
        p = s.p; s.gate('r8'); p.stream(6); s.gated('r8')
        s.gated('f0')
        s.check(vFR, sOF8, vFL, None, sM8)
        for i4 in range(4):
            bs = []
            p.salu('s_add_u32', sT8, sO8, 4096 * i4)
            for i in range(4):
                b = s.rbuf(); bs.append(b)
                p.vld('buffer_load_dwordx4', b, vL16, srdWS, sT8, off=1024 * i, flags='sc1', xrd=['chk'], lat=1200)
            s.pend8 += bs
        for b in s.pend8: s.selacc(OWN8[0], OWN8[1], b)
        c0, c1 = OWN8
        s.pack2(c0, c1)
        p.vst('buffer_store_dwordx2', c0.sub(0, 2), vXO, srdO, sX8)
        p.salu('s_add_u32', sT8, sX8, sT1OFF)
        p.vst('buffer_store_dwordx2', c0.sub(2, 2), vXO, srdO, sT8)
        p.stream(0)
    def finish(s):
        p = s.p; p.stream(6)
        s.gated('r6'); bs = s.recv_loads(6)
        s.gated('r7'); bs += s.recv_loads(7)
        s.recv_acc(bs)
        s.recv_acc(s.recv_loads(8))
        for T in range(2):
            s.pack2(OWN[T], OWN[2 + T])
            if T == 1: p.salu('s_add_u32', sT8, sXO, sT1OFF)
            for t in range(2):
                p.vst('buffer_store_dwordx2', OWN[T].sub(2 * t, 2), vXO, srdO, sXO if T == 0 else sT8, off=32 * t)
        p.stream(0)

    def stage_pre(s, n):
        p = s.p
        if n == 0: return
        d = ((n % NSLOT) - ((n - 1) % NSLOT)) * SLOT
        ST = s.stl[n]
        p.valu('v_add_u32', vL, d & 0xffffffff, vL)
        if ST[0] == 'P1':
            p.valu('v_add_u32', vQn, d & 0xffffffff, vQn); p.valu('v_add_u32', vQm, d & 0xffffffff, vQm)
        if ST[0] == 'LDH' and ST[1] > 0:
            p.valu('v_add_u32', vLH, d & 0xffffffff, vLH)

    def run_jobs(s):
        p = s.p
        J = s.jobs; N = len(J)
        first = {}; cnt = collections.Counter()
        for i, j in enumerate(J):
            first.setdefault(j['stage'], i); cnt[j['stage']] += 1
        dq = []
        for n in range(N + PD):
            m = n - PD
            if m >= 0 and J[m]['side']: J[m]['side']()
            rd = []
            if n < N:
                st = J[n]['stage']
                if first[st] == n:
                    for x in dq: x[1]()
                    dq = []
                    p.comment("---- stage %d %s" % (st, s.stl[st]))
                    p.barrier(need_vm=[('st', st)])
                    s.stage_pre(st)
                    if (st + 3) in first:
                        dl = s.stage_dmas(st + 3)
                        c = cnt[st]
                        dq = [(first[st] + 1 + (i * (c - 2)) // len(dl), d) for i, d in enumerate(dl)]
                if J[n]['pre']: J[n]['pre']()
                rd = J[n]['rd']
            mf = J[m]['mf'] if m >= 0 else []
            fr = aFR(n); fm = aFR(m)
            for u in range(max(len(rd), len(mf))):
                if u < len(rd):
                    p.dsr('ds_read_b64_tr_b16', fr.sub(2 * u, 2), rd[u][0], rd[u][1], xrd=rd[u][2:])
                dnow = None
                if dq and dq[0][0] <= n and u == 0:
                    dnow = dq.pop(0)[1]; dnow(0)
                if u < len(mf):
                    acc, b, z = mf[u][:3]
                    if len(mf[u]) > 3: p.mfma(acc, fm.sub(0, 2), b, 0 if z else acc, shape=mf[u][3])
                    else: p.mfma(acc, fm, b, 0 if z else acc)
                if dnow: dnow(1)
            if m >= 0 and J[m]['post']: J[m]['post']()

    def build(s):
        p = s.p
        s.build_stages()
        s.prologue()
        s.p0()
        p.setfill(2)
        s.hooks = {}; s.nchk = 0
        s.of32 = [C(18), C(19)]; s.of4 = [C(24).sub(0, 2), C(24).sub(2, 2)]
        s.hooks[(1, 0)] = lambda: p.setfill(4)
        s.hooks[(2, 6)] = lambda: p.setfill(3)
        s.hooks[(3, 1)] = lambda: s.gate('kvg')
        s.hooks[(3, 5)] = s.kv_gather
        s.hooks[(2, 0)] = s.g2_setup
        s.hooks[(3, 3)] = s.wol
        s.nrb = 0; s.pend8 = []
        def h2():
            p.setfill(2); s.recv_x()
        s.hooks[('g', 1)] = h2
        s.hooks[('g', 2)] = s.recv8
        for gp in range(1, 6): s.hooks[('g', gp + 2)] = s.recv(gp)
        s.hooks[('g', 8)] = lambda: s.gate('r6')
        s.hooks[('g', 9)] = lambda: s.gate('r7')
        s.p1_jobs()
        if s.dbg != 'A': s.p3_jobs()
        if s.dbg not in ('A', 'B'): s.g2_jobs()
        s.run_jobs()
        if s.dbg == 'B':
            rl = [s.hfrag(a, T)[j] for a in range(9) for T in range(2) for j in range(4)]
            rl += [s.phq[T][j >> 2][j & 3] for T in range(2) for j in range(10)]
            rl += [s.of32[T][j] for T in range(2) for j in range(4)] + [s.of4[T][j] for T in range(2) for j in range(2)]
            s.dump(rl)
        if s.dbg == 'A':
            rl = [A(i) for i in range(72)] + [V(i) for i in range(72)] + [V(72 + i) for i in range(56)] + [V(128 + i) for i in range(32)]
            s.dump(rl)
        p.fence()
        s.unstash('F1', vT1)
        p.salu('s_add_u32', sT, S(2), sW); p.salu('s_cmp_eq_u32', None, sT, 0); p.salu('s_cselect_b32', sT, 0, 0x7ffffff0)
        p.valu('v_mov_b32', vT2, sE1)
        p.vst('buffer_store_dword', vT2, vT1, srdWS, sT, flags='sc1')
        out = schedule(p)
        lines = finalize(out)
        kn = NAME + "_kernel"
        hdr = open("cdna_kernels/%s.s.ref" % NAME).read().split("; Override launch")[0]
        t = hdr + "; @launch grid=(256,1,1) block=(256,1,1) lds=%d\n" % LDS_BYTES
        t += '.amdgcn_target "amdgcn-amd-amdhsa--gfx950"\n.text\n.globl %s\n.p2align 8\n.type %s,@function\n%s:\n' % (kn, kn, kn)
        t += "\n".join(x if (x.endswith(":") or x.startswith(";")) else "  " + x for x in lines) + "\n"
        t += "L_end:\n  s_endpgm\n"
        t += "\n".join(p.tail) + "\n"
        t += ".p2align 8\nL_pad:\n.fill ((98304 + 512 - (L_pad - %s)) / 4), 4, 0xbf810000\n" % kn
        t += (".section .rodata,\"a\"\n.p2align 6\n.amdhsa_kernel %s\n  .amdhsa_next_free_vgpr 512\n  .amdhsa_next_free_sgpr 102\n  .amdhsa_accum_offset 256\n"
              "  .amdhsa_group_segment_fixed_size 0\n  .amdhsa_kernarg_size 80\n  .amdhsa_user_sgpr_count 2\n  .amdhsa_user_sgpr_kernarg_segment_ptr 1\n"
              "  .amdhsa_system_sgpr_workgroup_id_x 1\n.end_amdhsa_kernel\n") % kn
        return t

if __name__ == "__main__":
    dbg = sys.argv[2] if len(sys.argv) > 2 else None
    k = K(dbg=dbg, stop=dbg)
    open(sys.argv[1], "w").write(k.build())
```
